```python
import torch

def _softmax(x, axis=-1):
    return torch.softmax(x, dim=axis)
def _gelu(x):
    return torch.nn.functional.gelu(x, approximate="tanh")
def _silu(x):
    return torch.nn.functional.silu(x)
def _sigmoid(x):
    return torch.sigmoid(x)
def _layernorm(x, axis=-1, eps=1e-5):
    m = x.mean(dim=axis, keepdim=True)
    v = x.var(dim=axis, keepdim=True, unbiased=False)
    return (x - m) / torch.sqrt(v + eps)
def _scatter_add(tgt, idx, src, axis=0):
    return tgt.clone().index_add_(axis, idx, src)
def _segment_sum(src, seg, n):
    out = torch.zeros((n,) + src.shape[1:], dtype=src.dtype)
    return out.index_add_(0, seg, src)
def _pad(x, pw):
    flat = tuple(v for pair in reversed(pw) for v in pair)
    return torch.nn.functional.pad(x, flat)

kernel_name = 'parallel_sum__ssm_conv_h3__moe_arch_mod__prompt'

def setup_inputs():

    _w = (lambda a: (lambda t: t.to(torch.bfloat16) if t.is_floating_point() else t)(torch.as_tensor(a)))
    def _A_setup():
        B, S, D = 1, 2048, 1024
        ks = 4
        return {
            "q": _w((lambda *s: torch.randn(*s, dtype=torch.bfloat16) * 0.05)(B, S, D)),
            "k": _w((lambda *s: torch.randn(*s, dtype=torch.bfloat16) * 0.8)(B, S, D)),
            "v": _w((lambda *s: torch.randn(*s, dtype=torch.bfloat16) * 0.8)(B, S, D)),
            "shift_k": _w((lambda *s: torch.randn(*s, dtype=torch.bfloat16) * 0.8)(D, ks) * 0.5),
            "ssm_k": _w((lambda *s: torch.randn(*s, dtype=torch.bfloat16) * 0.8)(D, S) * (1.0 / S ** 0.5)),
            "ssm_D": _w((lambda *s: torch.randn(*s, dtype=torch.bfloat16) * 0.8)(D)),
        }
    _A_in = _A_setup()

    def _B_setup():
        B, S, D, F, C = 1, 2048, 1024, 3584, 2
        return {
            "x": _w((lambda *s: torch.randn(*s, dtype=torch.bfloat16) * 0.05)(B, S, D)),
            "w_r": _w((lambda *s: torch.randn(*s, dtype=torch.bfloat16) * 0.05)(D)),
            "w_gate": _w((lambda *s: torch.randn(*s, dtype=torch.bfloat16) * 0.05)(D, F)),
            "w_up": _w((lambda *s: torch.randn(*s, dtype=torch.bfloat16) * 0.05)(D, F)),
            "w_down": _w((lambda *s: torch.randn(*s, dtype=torch.bfloat16) * 0.05)(F, D)),
        }
    _B_in = _B_setup()

    return {
        "A_q": _A_in["q"],
        "A_k": _A_in["k"],
        "A_v": _A_in["v"],
        "A_shift_k": _A_in["shift_k"],
        "A_ssm_k": _A_in["ssm_k"],
        "A_ssm_D": _A_in["ssm_D"],
        "B_x": _B_in["x"],
        "B_w_r": _B_in["w_r"],
        "B_w_gate": _B_in["w_gate"],
        "B_w_up": _B_in["w_up"],
        "B_w_down": _B_in["w_down"],
    }

def reference(A_q, A_k, A_v, A_shift_k, A_ssm_k, A_ssm_D, B_x, B_w_r, B_w_gate, B_w_up, B_w_down):
    def _A_ref(q, k, v, shift_k, ssm_k, ssm_D):
        B, S, D = q.shape
        ks = shift_k.shape[-1]
        k_pad = _pad(k, ((0, 0), (ks - 1, 0), (0, 0)))
        k_shift = torch.zeros_like(k)
        for t in range(ks):
            k_shift = k_shift + k_pad[:, t:t + S, :] * shift_k[:, ks - 1 - t][None, None, :]
        kv = k_shift * v
        L = 2 * S
        kv_pad = _pad(kv, ((0, 0), (0, S), (0, 0)))
        kf_pad = _pad(ssm_k, ((0, 0), (0, S)))
        kv_f = (lambda x, axes=(-2,-1): torch.fft.rfft2(x.float(), dim=axes))(kv_pad[:, None, :, :], axes=(1, 2))
        kf_f = (lambda x, axes=(-2,-1): torch.fft.rfft2(x.float(), dim=axes))(kf_pad[:, None, :], axes=(1, 2))
        kf_f = (lambda x, *d: x.permute(*d))(kf_f, 1, 2, 0)
        y_f = kv_f * kf_f[None, :, :, :]
        y = (lambda x, s, axes=(-2,-1): torch.fft.irfft2(x, s=s, dim=axes).to(torch.bfloat16))(y_f, (1, L), axes=(1, 2))[:, 0, :S, :]
        y = y + kv * ssm_D[None, None, :]
        return q * y

    def _B_ref(x, w_r, w_gate, w_up, w_down):
        B, S, D = x.shape
        C = 2
        r = x @ w_r
        idx = torch.argsort(-r, axis=-1)[:, :C]
        idx_e = (lambda x, n, axis: torch.repeat_interleave(x, n, dim=axis))(idx.reshape(B, C, 1), D, axis=2)
        x_sel = (lambda x, i, axis: torch.take_along_dim(x, i, dim=axis))(x, idx_e, axis=1)
        g = _silu(x_sel @ w_gate)
        u = x_sel @ w_up
        y = (g * u) @ w_down
        r_sel = _sigmoid((lambda x, i, axis: torch.take_along_dim(x, i, dim=axis))(r, idx, axis=1))
        y = y * r_sel.reshape(B, C, 1)
        b_off = (torch.arange(B) * S).reshape(B, 1)
        flat_idx = (idx + b_off).reshape(B * C)
        zero = (x * 0.0).reshape(B * S, D)
        upd = _scatter_add(zero, flat_idx, y.reshape(B * C, D), axis=0)
        return x + upd.reshape(B, S, D)

    x = A_q
    xn = _layernorm(x, axis=-1)
    return x + _A_ref(xn, A_k, A_v, A_shift_k, A_ssm_k, A_ssm_D) + _B_ref(xn, B_w_r, B_w_gate, B_w_up, B_w_down)
```

```python
import re

REG_RE = re.compile(r'^(-|abs\()?([vsa])(\d+)\)?$')
RNG_RE = re.compile(r'^(-)?([vsa])\[(\d+):(\d+)\]$')

def parse_regs(op):
    op = op.strip()
    if op.startswith('|') and op.endswith('|'):
        op = op[1:-1]
    m = REG_RE.match(op)
    if m:
        return [(m.group(2), int(m.group(3)))]
    m = RNG_RE.match(op)
    if m:
        return [(m.group(2), i) for i in range(int(m.group(3)), int(m.group(4)) + 1)]
    if op == 'vcc':
        return [('s', 106), ('s', 107)]
    if op == 'vcc_lo':
        return [('s', 106)]
    if op == 'vcc_hi':
        return [('s', 107)]
    if op == 'exec':
        return [('s', 126), ('s', 127)]
    if op == 'm0':
        return [('s', 124)]
    return []

TRANS = ('v_exp_f32', 'v_log_f32', 'v_rcp_f32', 'v_rsq_f32', 'v_sqrt_f32', 'v_sin_f32', 'v_cos_f32')

class Ins:
    def __init__(self, text):
        self.text = text
        t = text.split(';')[0].strip()
        parts = t.split(None, 1)
        self.mn = parts[0]
        rest = parts[1] if len(parts) > 1 else ''
        ops, cur, depth = [], '', 0
        for ch in rest:
            if ch == '[':
                depth += 1
            if ch == ']':
                depth -= 1
            if ch == ',' and depth == 0:
                ops.append(cur.strip()); cur = ''
            else:
                cur += ch
        if cur.strip():
            ops.append(cur.strip())
        self.mods = ''
        if ops:
            sp = ops[-1].split(None, 1)
            ops[-1] = sp[0]
            if len(sp) > 1:
                self.mods = sp[1]
        self.ops = ops
        mn = self.mn
        self.is_mfma = mn.startswith('v_mfma')
        self.is_valu = mn.startswith('v_') and not self.is_mfma
        self.is_ds = mn.startswith('ds_')
        self.is_vmem = mn.startswith('buffer_') or mn.startswith('global_')
        self.is_salu = mn.startswith('s_')
        self.is_dpp = ('_dpp' in mn) or ('quad_perm' in self.mods) or ('row_' in self.mods) or ('wave_' in self.mods)
        self.is_trans = mn.split('_e')[0] in TRANS or mn in TRANS
        self.is_permlane = mn.startswith('v_permlane')
        self.is_readlane = mn.startswith('v_readlane') or mn.startswith('v_readfirstlane')
        self.dst, self.src = [], []
        R = [parse_regs(o) for o in ops]
        if self.is_mfma:
            self.dst = R[0]; self.srcA = R[1]; self.srcB = R[2]; self.srcC = R[3]
            self.src = R[1] + R[2] + R[3]
        elif self.is_valu:
            if self.is_permlane:
                self.dst = R[0] + R[1]; self.src = R[0] + R[1]
            elif re.match(r'v_(add|sub|subrev|addc|subb|subbrev)_co_', mn) or mn.startswith('v_mad_u64') or mn.startswith('v_div_scale'):
                self.dst = R[0] + R[1]; self.src = sum(R[2:], [])
            else:
                self.dst = R[0]; self.src = sum(R[1:], [])
                if mn.startswith('v_fmac') or mn.startswith('v_dot2c') or mn.startswith('v_writelane') or self.is_dpp or 'sdwa' in mn:
                    self.src = self.src + R[0]
                if mn.startswith('v_cndmask') and len(ops) == 3:
                    self.src += [('s', 106), ('s', 107)]
                if mn.startswith('v_cmpx'):
                    self.dst = self.dst + [('s', 126), ('s', 127)]
        elif self.is_ds:
            if mn.startswith('ds_read') or 'rtn' in mn or mn.startswith('ds_bpermute') or mn.startswith('ds_permute') or mn.startswith('ds_swizzle'):
                self.dst = R[0]; self.src = sum(R[1:], [])
            else:
                self.src = sum(R, [])
        elif self.is_vmem:
            if '_load' in mn and ' lds' not in (' ' + self.mods):
                self.dst = R[0]; self.src = sum(R[1:], [])
            else:
                self.src = sum(R, [])
            self.wide_store = ('store_dwordx4' in mn or 'store_dwordx3' in mn)
            if self.wide_store:
                self.store_data = R[0] if mn.startswith('buffer_') else R[1]
        elif self.is_salu:
            if mn.startswith('s_cmp') or mn.startswith('s_cbranch') or mn in ('s_branch', 's_waitcnt', 's_nop', 's_barrier', 's_endpgm', 's_sleep', 's_setprio', 's_bitcmp1_b32', 's_bitcmp0_b32'):
                self.src = sum(R, [])
            else:
                self.dst = R[0] if R else []
                self.src = sum(R[1:], [])
    def states(self):
        if self.mn == 's_nop':
            return int(self.ops[0], 0) + 1
        return 1

def mfma_passes(mn):
    if '32x32x16' in mn or '32x32x8' in mn:
        return 8
    if '16x16x32' in mn or '16x16x16' in mn:
        return 4
    raise ValueError(mn)

def need(p, c):
    n = 0
    pd, cs, cd = set(p.dst), set(c.src), set(c.dst)
    if p.is_valu:
        vd = {r for r in pd if r[0] in 'va'}
        sd = {r for r in pd if r[0] == 's'}
        if vd & cs:
            if c.is_mfma: n = max(n, 2)
            if c.is_valu and c.is_dpp: n = max(n, 2)
            if c.is_permlane: n = max(n, 2)
            if c.is_readlane: n = max(n, 1)
            if p.is_trans and c.is_valu: n = max(n, 1)
            if ('sdwa' in p.mn or 'op_sel' in p.mods) and c.is_valu and not p.mn.startswith('v_pk_'): n = max(n, 1)
        if sd & cs:
            if c.is_vmem: n = max(n, 5)
            if c.is_valu: n = max(n, 4 if (c.is_readlane or c.mn.startswith('v_writelane')) else 2)
            if c.is_mfma: n = max(n, 4)
            if c.is_salu: n = max(n, 1)
        if ('s', 126) in sd:
            if c.is_valu and (c.is_dpp): n = max(n, 5)
            if c.is_mfma or c.is_readlane or c.is_permlane: n = max(n, 4)
        if (('s', 106) in sd or ('s', 126) in sd) and c.mn.startswith('s_cbranch_vcc'):
            n = max(n, 1)
    if p.is_mfma:
        ps = mfma_passes(p.mn)
        big = {4: 8, 8: 12}[ps]
        if c.is_mfma:
            if pd & set(c.srcA + c.srcB): n = max(n, big)
            if pd & set(c.srcC):
                if p.dst == c.srcC and mfma_passes(c.mn) == ps: pass
                else: n = max(n, {4: 6, 8: 10}[ps])
            elif pd & cd:
                n = max(n, big)
        else:
            if pd & (cs | cd): n = max(n, big)
            if c.is_valu and set(p.srcC) & cd: n = max(n, {4: 3, 8: 7}[ps])
    if p.is_vmem and getattr(p, 'wide_store', False):
        if set(p.store_data) & cd: n = max(n, 2)
    if p.is_salu and ('s', 124) in pd and (c.is_vmem and 'lds' in c.mods): n = max(n, 1)
    return n

def worst(p):
    if p.is_mfma: return {4: 8, 8: 12}[mfma_passes(p.mn)]
    if p.is_valu:
        if any(r[0] == 's' for r in p.dst): return 5
        return 2
    if p.is_vmem and getattr(p, 'wide_store', False): return 2
    return 0

class Asm:
    def __init__(self):
        self.lines = []
        self.hist = []
        self.count = 0
    def raw(self, t):
        self.lines.append(t)
    def comment(self, t):
        self.lines.append('    ; ' + t)
    def _emit(self, ins):
        st = ins.states()
        self.hist = [(p, d + st) for (p, d) in self.hist if d + st < 13]
        self.hist.append((ins, 0))
        self.lines.append('    ' + ins.text)
        self.count += 1
    def nop(self, n):
        while n > 0:
            k = min(n, 16)
            self._emit(Ins('s_nop %d' % (k - 1)))
            n -= k
    def flush(self):
        n = 0
        for p, d in self.hist:
            n = max(n, worst(p) - d)
        self.nop(n)
        self.hist = []
    def __call__(self, text, noflush=False):
        for t in text.split('\n'):
            t = t.strip()
            if not t or t.startswith(';'):
                continue
            ins = Ins(t)
            n = 0
            for p, d in self.hist:
                n = max(n, need(p, ins) - d)
            if (ins.mn.startswith('s_cbranch') or ins.mn == 's_branch') and not noflush:
                for p, d in self.hist:
                    n = max(n, worst(p) - d - 1)
            self.nop(n)
            self._emit(ins)
    def label(self, name, noflush=False):
        self.lines.append(name + ':')
    def text(self):
        return '\n'.join(self.lines) + '\n'
```

```python
import sys, os
from asmlib import Asm

NAME = 'parallel_sum__ssm_conv_h3__moe_arch_mod__prompt'

class Cfg:
    ts = False
    exact_ks = 2
    exact_fin = True
    pol_in = ' nt'
    pol_w = ' nt'
    pol_k = ''
    pol_h = ''
    pol_out = ''
    n1 = 16
    force_slow = False

WS_KEY = 0x0
WS_STAT = 0x2000
WS_FA = 0x8000
WS_FB = 0xA000
WS_FY = 0xC000
WS_PRE = 0x10000
WS_DP = 0x80000
WS_KB = 0x400000
WS_YB = 0x800000
WS_TS = 0x1000000
TSTR = 4160
TABW = 4 * TSTR
L_TAB = 0
USTR = 4608
L_U = 4 * TABW
L_M = L_U + 4 * USTR
L_CNT = L_M
L_SEL = L_M + 64
L_KEYS = L_M + 96
L_H = L_M + 128
L_UPD = L_H + 1024
L_RED = L_UPD + 1024
L_RED2 = L_RED + 4096
LDS_BYTES = L_RED2 + 4096 + 256

BIG = 60000

def srd(a, d, ptr, size):
    a(f's_mov_b32 s{d}, s{ptr}')
    a(f's_and_b32 s{d+1}, s{ptr+1}, 0xffff')
    a(f's_mov_b32 s{d+2}, {size}')
    a(f's_mov_b32 s{d+3}, 0x20000')

def srd_off(a, d, ptr, off, size):
    a(f's_add_u32 s{d}, s{ptr}, {off}')
    a(f's_addc_u32 s{d+1}, s{ptr+1}, 0')
    a(f's_and_b32 s{d+1}, s{d+1}, 0xffff')
    a(f's_mov_b32 s{d+2}, {size}')
    a(f's_mov_b32 s{d+3}, 0x20000')

def S(d): return f's[{d}:{d+3}]'
def V(b, n): return f'v[{b}:{b+n-1}]' if n > 1 else f'v{b}'

P_Q, P_K, P_V, P_SH, P_HK, P_D, P_BX, P_WR, P_G, P_U, P_DN, P_OUT, P_DBG, P_WS = range(16, 44, 2)

VTS = 255

def gen(cfg):
    a = Asm()
    def ts(slot):
        if not cfg.ts: return
        a('s_memrealtime s[100:101]')
        a('s_waitcnt lgkmcnt(0)')
        a(f'v_writelane_b32 v{VTS}, s100, {slot}')
    def ts_store(srd_ws):
        if not cfg.ts: return
        a('s_lshl_b32 s100, s2, 3')
        a('s_add_u32 s100, s100, s3')
        a('s_lshl_b32 s100, s100, 8')
        a(f's_add_u32 s100, s100, {WS_TS}')
        a('v_lshlrev_b32 v254, 2, v0')
        a(f'buffer_store_dword v{VTS}, v254, {S(srd_ws)}, s100 offen')

    def unpack(dlo, dhi, src):
        a(f'v_lshlrev_b32 v{dlo}, 16, v{src}')
        a(f'v_and_b32 v{dhi}, 0xffff0000, v{src}')
    def round2(p, tmp):
        a(f'v_cvt_pk_bf16_f32 v{tmp}, v{p}, v{p+1}')
        unpack(p, p + 1, tmp)
    def round1(r):
        a(f'v_cvt_pk_bf16_f32 v{r}, v{r}, v{r}')
        a(f'v_and_b32 v{r}, 0xffff0000, v{r}')
    def wave_reduce(op, regs, tmps):
        for mod in ('quad_perm:[1,0,3,2]', 'quad_perm:[2,3,0,1]', 'row_half_mirror', 'row_mirror'):
            for r in regs:
                a(f'{op}_dpp v{r}, v{r}, v{r} {mod} row_mask:0xf bank_mask:0xf')
        cross_rows(op, regs, tmps)
    def cross_rows(op, regs, tmps):
        for sw in ('v_permlane16_swap_b32', 'v_permlane32_swap_b32'):
            for r, t in zip(regs, tmps):
                a(f'v_mov_b32 v{t}, v{r}')
            for r, t in zip(regs, tmps):
                a(f'{sw} v{t}, v{r}')
            for r, t in zip(regs, tmps):
                a(f'{op} v{r}, v{r}, v{t}')

    a.label(f'{NAME}_kernel')
    a('s_cmp_ge_u32 s2, 256')
    a('s_cbranch_scc1 L_end')
    a('s_load_dwordx16 s[16:31], s[0:1], 0')
    a('s_load_dwordx8 s[32:39], s[0:1], 64')
    a('s_load_dwordx4 s[40:43], s[0:1], 96')
    a('v_lshrrev_b32 v1, 6, v0')
    a('v_and_b32 v0, 63, v0')
    a('v_readfirstlane_b32 s3, v1')
    a('s_and_b32 s4, s2, 7')
    a('s_lshr_b32 s5, s2, 3')
    if cfg.ts:
        a(f'v_mov_b32 v{VTS}, 0')
    a('s_cmp_ge_u32 s3, 4')
    a('s_cbranch_scc1 L_M')

    K_, V_, SH_, HK_, DD_, OUT_, WS_, DBG_, Q_, SCR_ = range(44, 84, 4)
    s4k, s8k, s12k, s1m, s2m, s3m = 84, 85, 86, 87, 88, 89
    sHC, sHR, sXCC, sCNT, sMODE, sCH, sCL, sHC2 = 90, 91, 92, 93, 94, 95, 96, 97
    vC, vS, vAa, vBa, vY, vF, vU, vT0, vT1, vT2, vT3 = 2, 3, 4, 5, 6, 7, 8, 9, 10, 11, 12
    vN = 14
    KR, VR, SHR, HS = 16, 38, 56, 64
    vFL = 54
    vD = 88
    vPA = 89; vFA = 90; vP = 92
    W_ = 96
    KF = 112
    KVP = 156
    TMP = 172
    a('s_and_b32 s%d, s3, 1' % sHC)
    a('s_lshr_b32 s%d, s3, 1' % sHR)
    a('s_lshl_b32 s6, s5, 17')
    a(f's_lshl_b32 s7, s{sHR}, 16')
    a('s_add_u32 s6, s6, s7')
    a('s_lshl_b32 s7, s4, 8')
    a('s_add_u32 s6, s6, s7')
    a(f's_lshl_b32 s7, s{sHC}, 7')
    a('s_add_u32 s6, s6, s7')
    a(f'v_and_b32 v{vT0}, 15, v0')
    a(f'v_lshrrev_b32 v{vT1}, 4, v0')
    a(f'v_lshlrev_b32 v{vC}, 14, v{vT1}')
    a(f'v_lshl_add_u32 v{vC}, v{vT0}, 3, v{vC}')
    a(f'v_add_u32 v{vC}, s6, v{vC}')
    a(f'v_subrev_u32 v{vT2}, 6144, v{vC}')
    a(f'v_subrev_u32 v{vT3}, 2048, v{vC}')
    a(f's_mov_b32 s{s4k}, 4096')
    a(f's_mov_b32 s{s8k}, 8192')
    a(f's_mov_b32 s{s12k}, 12288')
    a(f's_mov_b32 s{s1m}, 0x100000')
    a(f's_mov_b32 s{s2m}, 0x200000')
    a(f's_mov_b32 s{s3m}, 0x300000')
    a('s_waitcnt lgkmcnt(0)')
    ts(0)
    srd(a, K_, P_K, 0x400000)
    srd(a, V_, P_V, 0x400000)
    rowoff = [('0', 0), ('0', 2048), (f's{s4k}', 0), (f's{s4k}', 2048), (f's{s8k}', 0), (f's{s8k}', 2048), (f's{s12k}', 0), (f's{s12k}', 2048)]
    def off(o): return f' offset:{o}' if o else ''
    a(f'buffer_load_dwordx2 {V(KR,2)}, v{vT2}, {S(K_)}, 0 offen{cfg.pol_k}')
    a(f'buffer_load_dwordx2 {V(KR+2,2)}, v{vT2}, {S(K_)}, 0 offen offset:2048{cfg.pol_k}')
    a(f'buffer_load_dwordx2 {V(KR+4,2)}, v{vT3}, {S(K_)}, 0 offen{cfg.pol_k}')
    for r in range(8):
        so, io = rowoff[r]
        a(f'buffer_load_dwordx2 {V(KR+6+2*r,2)}, v{vC}, {S(K_)}, {so} offen{off(io)}{cfg.pol_k}')
    srd(a, SH_, P_SH, 8192)
    a('s_lshl_b32 s7, s4, 10')
    a(f's_lshl_b32 s8, s{sHC}, 9')
    a('s_add_u32 s7, s7, s8')
    a(f'v_lshlrev_b32 v{vT2}, 5, v{vT0}')
    a(f'buffer_load_dwordx4 {V(SHR,4)}, v{vT2}, {S(SH_)}, s7 offen')
    a(f'buffer_load_dwordx4 {V(SHR+4,4)}, v{vT2}, {S(SH_)}, s7 offen offset:16')
    for r in range(8):
        so, io = rowoff[r]
        a(f'buffer_load_dwordx2 {V(VR+2*r,2)}, v{vC}, {S(V_)}, {so} offen{off(io)}{cfg.pol_in}')
    srd(a, HK_, P_HK, 0x400000)
    srd(a, DD_, P_D, 2048)
    a(f's_lshl_b32 s{sCH}, s4, 7')
    a('s_lshl_b32 s7, s5, 2')
    a(f's_add_u32 s{sCH}, s{sCH}, s7')
    a(f's_add_u32 s{sCH}, s{sCH}, s3')
    a(f's_lshl_b32 s7, s{sCH}, 12')
    a(f'v_lshlrev_b32 v{vT2}, 4, v0')
    for it in range(4):
        a(f'buffer_load_dwordx4 {V(HS+6*it,4)}, v{vT2}, {S(HK_)}, s7 offen{off(1024*it)}{cfg.pol_h}')
        a(f'buffer_load_dwordx2 {V(HS+6*it+4,2)}, v{vT2}, {S(HK_)}, s7 offen offset:{1024*it+16}{cfg.pol_h}')
    a(f's_lshl_b32 s7, s{sCH}, 1')
    a(f'v_mov_b32 v{vT3}, 0')
    a(f'buffer_load_ushort v{vD}, v{vT3}, {S(DD_)}, s7 offen')
    srd(a, OUT_, P_OUT, 0x400000)
    srd(a, WS_, P_WS, 0x10000000)
    srd(a, DBG_, P_DBG, 256)
    srd(a, Q_, P_Q, 0x400000)
    srd(a, SCR_, P_OUT, 0x400000)
    a(f's_getreg_b32 s{sXCC}, hwreg(HW_REG_XCC_ID, 0, 4)')
    a(f'v_lshlrev_b32 v{vS}, 12, v{vT0}')
    a(f'v_lshl_add_u32 v{vS}, v{vT1}, 4, v{vS}')
    a(f'v_add_u32 v{vS}, s6, v{vS}')
    a(f's_lshr_b32 s{sHC2}, s5, 4')
    a('s_and_b32 s7, s5, 15')
    a('s_lshl_b32 s7, s7, 2')
    a(f's_add_u32 s{sCL}, s7, s3')
    a(f's_lshr_b32 s9, s{sCL}, 1')
    a('s_lshl_b32 s9, s9, 11')
    a('s_lshl_b32 s7, s4, 8')
    a('s_add_u32 s9, s9, s7')
    a(f's_lshl_b32 s7, s{sHC2}, 7')
    a('s_add_u32 s9, s9, s7')
    a(f's_and_b32 s7, s{sCL}, 1')
    a('s_lshl_b32 s7, s7, 6')
    a('s_add_u32 s9, s9, s7')
    a(f'v_lshrrev_b32 v{vF}, 2, v0')
    a(f'v_lshlrev_b32 v{vF}, 16, v{vF}')
    a(f'v_and_b32 v{vT2}, 3, v0')
    a(f'v_lshl_add_u32 v{vF}, v{vT2}, 4, v{vF}')
    a(f'v_add_u32 v{vF}, s9, v{vF}')
    a(f'v_and_b32 v{vT2}, 1, v{vT1}')
    a(f'v_lshlrev_b32 v{vT2}, 3, v{vT2}')
    a(f'v_lshrrev_b32 v{vT3}, 1, v{vT0}')
    a(f'v_add_u32 v{vT2}, v{vT2}, v{vT3}')
    a(f'v_lshlrev_b32 v{vY}, 16, v{vT2}')
    a(f'v_and_b32 v{vT2}, 1, v{vT0}')
    a(f'v_lshlrev_b32 v{vT2}, 1, v{vT2}')
    a(f'v_lshrrev_b32 v{vT3}, 1, v{vT1}')
    a(f'v_add_u32 v{vT2}, v{vT2}, v{vT3}')
    a(f'v_lshl_add_u32 v{vY}, v{vT2}, 4, v{vY}')
    a(f'v_add_u32 v{vY}, s9, v{vY}')
    a(f's_mul_i32 s10, s3, {TABW}')
    a(f's_mul_i32 s11, s3, {USTR}')
    a(f's_add_u32 s11, s11, {L_U}')
    a(f'v_lshlrev_b32 v{vT2}, 4, v0')
    a('s_add_u32 s7, s11, 1008')
    a(f'v_sub_u32 v{vU}, s7, v{vT2}')
    a(f'v_lshlrev_b32 v{vT2}, 5, v{vT0}')
    a('s_add_u32 s7, s11, 480')
    a(f'v_sub_u32 v{vBa}, s7, v{vT2}')
    a(f'v_lshl_add_u32 v{vBa}, v{vT1}, 4, v{vBa}')
    a(f'v_add_u32 v{vT2}, 1, v{vT0}')
    a(f'v_and_b32 v{vT3}, 3, v{vT2}')
    a(f'v_mul_u32_u24 v{vAa}, {TSTR}, v{vT3}')
    a(f'v_and_b32 v{vT2}, 0x1c, v{vT2}')
    a(f'v_lshl_add_u32 v{vAa}, v{vT2}, 1, v{vAa}')
    a(f'v_lshl_add_u32 v{vAa}, v{vT1}, 4, v{vAa}')
    a(f'v_add_u32 v{vAa}, s10, v{vAa}')
    a('s_lshl_b32 s7, s4, 1')
    a(f's_add_u32 s8, s7, s{sHC}')
    a('s_lshl_b32 s8, s8, 6')
    a('s_lshl_b32 s12, s5, 1')
    a('s_add_u32 s8, s8, s12')
    a(f's_add_u32 s8, s8, s{sHR}')
    a('s_lshl_b32 s8, s8, 3')
    a(f'v_mov_b32 v{vFA}, s8')
    a(f's_add_u32 s8, s7, s{sHC2}')
    a('s_lshl_b32 s8, s8, 9')
    a(f'v_lshlrev_b32 v{vPA}, 3, v0')
    a(f'v_add_u32 v{vPA}, s8, v{vPA}')
    for i in range(4):
        a(f'v_mov_b32 v{TMP+i}, 0')
    a(f'v_lshlrev_b32 v{vT2}, 3, v0')
    a(f'v_add_u32 v{vT2}, s11, v{vT2}')
    a(f'ds_write_b64 v{vT2}, {V(TMP,2)} offset:4096')
    a(f'v_bfe_u32 v{vT2}, v0, 1, 2')
    a(f'v_mul_u32_u24 v{vT2}, {TSTR}, v{vT2}')
    a(f'v_and_b32 v{vT3}, 1, v0')
    a(f'v_lshl_add_u32 v{vT2}, v{vT3}, 4, v{vT2}')
    a(f'v_add_u32 v{vT2}, s10, v{vT2}')
    a(f'ds_write_b128 v{vT2}, {V(TMP,4)}')
    a('s_barrier')
    a(f'v_mov_b32 v{vT3}, 0')
    a(f'buffer_load_dwordx2 {V(vN,2)}, v{vT3}, {S(DBG_)}, 0 offen sc1')
    a('s_waitcnt vmcnt(18)')
    ts(1)
    for ch in range(4):
        unpack(W_ + 0 * 4 + ch, W_ + 1 * 4 + ch, SHR + 2 * ch)
        unpack(W_ + 2 * 4 + ch, W_ + 3 * 4 + ch, SHR + 2 * ch + 1)
    for r in range(11):
        unpack(KF + 4 * r, KF + 4 * r + 1, KR + 2 * r)
        unpack(KF + 4 * r + 2, KF + 4 * r + 3, KR + 2 * r + 1)
    a('s_waitcnt vmcnt(10)')
    ts(2)
    def pk(op, d, x, y, z=None):
        if z is None: a(f'{op} {V(d,2)}, {V(x,2)}, {V(y,2)}')
        else: a(f'{op} {V(d,2)}, {V(x,2)}, {V(y,2)}, {V(z,2)}')
    for rp in range(4):
        units = [(rr, h) for rr in (2 * rp, 2 * rp + 1) for h in (0, 2)]
        ACC = lambda rr, h: TMP + 4 * (rr & 1) + h
        PR = lambda rr, h: TMP + 8 + 4 * (rr & 1) + h
        RT = lambda rr, h: TMP + 16 + 2 * (rr & 1) + h // 2
        for rr, h in units:
            pk('v_pk_mul_f32', ACC(rr, h), KF + 4 * rr + h, W_ + 12 + h)
        if cfg.exact_ks == 2:
            for rr, h in units: round2(ACC(rr, h), RT(rr, h))
        for t in (2, 1, 0):
            if cfg.exact_ks == 2:
                for rr, h in units:
                    pk('v_pk_mul_f32', PR(rr, h), KF + 4 * (rr + 3 - t) + h, W_ + 4 * t + h)
                for rr, h in units: round2(PR(rr, h), RT(rr, h))
                for rr, h in units:
                    pk('v_pk_add_f32', ACC(rr, h), ACC(rr, h), PR(rr, h))
                for rr, h in units: round2(ACC(rr, h), RT(rr, h))
            else:
                for rr, h in units:
                    pk('v_pk_fma_f32', ACC(rr, h), KF + 4 * (rr + 3 - t) + h, W_ + 4 * t + h, ACC(rr, h))
        if cfg.exact_ks == 1:
            for rr, h in units: round2(ACC(rr, h), RT(rr, h))
        for rr, h in units:
            unpack(PR(rr, h), PR(rr, h) + 1, VR + 2 * rr + h // 2)
        for rr, h in units:
            pk('v_pk_mul_f32', ACC(rr, h), ACC(rr, h), PR(rr, h))
        for ch in range(4):
            a(f'v_cvt_pk_bf16_f32 v{KVP+4*ch+3-rp}, v{TMP+4+ch}, v{TMP+ch}')
    soff = [0, 64, 2048, 2112]
    for ch in range(4):
        a(f'buffer_store_dwordx4 {V(KVP+4*ch,4)}, v{vS}, {S(OUT_)}, 0 offen{off(soff[ch])}')
    ts(3)
    a('s_waitcnt vmcnt(6)')
    a(f'v_lshlrev_b32 v{vT2}, 4, v0')
    a(f'v_add_u32 v{vT2}, s10, v{vT2}')
    for it in range(4):
        d = HS + 6 * it
        t1, t2, t3 = TMP, TMP + 4, TMP + 8
        if it & 1: t1, t2, t3 = TMP + 12, TMP + 16, TMP + 20
        a(f'ds_write_b128 v{vT2}, {V(d,4)} offset:{32+1024*it}')
        for jj in range(4):
            a(f'v_alignbyte_b32 v{t1+jj}, v{d+jj+1}, v{d+jj}, 2')
        a(f'ds_write_b128 v{vT2}, {V(t1,4)} offset:{32+1024*it+TSTR}')
        for jj in range(4):
            a(f'v_mov_b32 v{t2+jj}, v{d+jj+1}')
        a(f'ds_write_b128 v{vT2}, {V(t2,4)} offset:{32+1024*it+2*TSTR}')
        for jj in range(4):
            a(f'v_alignbyte_b32 v{t3+jj}, v{d+jj+2}, v{d+jj+1}, 2')
        a(f'ds_write_b128 v{vT2}, {V(t3,4)} offset:{32+1024*it+3*TSTR}')
        if it == 0:
            a(f'v_lshlrev_b32 v{vT3}, 16, v{d}')
            a('s_mov_b64 exec, 1')
            a(f'ds_write_b32 v{vT2}, v{vT3} offset:{TSTR+28}')
            a(f'ds_write_b32 v{vT2}, v{d} offset:{2*TSTR+28}')
            a(f'ds_write_b32 v{vT2}, v{vT3} offset:{3*TSTR+24}')
            a(f'ds_write_b32 v{vT2}, v{t1} offset:{3*TSTR+28}')
            a('s_mov_b64 exec, -1')
        if it == 1:
            a('s_waitcnt vmcnt(0)')
            a(f's_mov_b32 s{sCNT}, 0')
            a.label('L_c_nonce')
            a(f'v_cmp_ne_u64 vcc, 0, {V(vN,2)}')
            a('s_cbranch_vccnz L_c_nonce_ok')
            a(f'v_mov_b32 v{vT3}, 0')
            a(f'buffer_load_dwordx2 {V(vN,2)}, v{vT3}, {S(DBG_)}, 0 offen sc1')
            a(f's_add_u32 s{sCNT}, s{sCNT}, 1')
            a('s_sleep 2')
            a('s_waitcnt vmcnt(0)')
            a(f's_cmp_lt_u32 s{sCNT}, {BIG}')
            a('s_cbranch_scc1 L_c_nonce')
            a.label('L_c_nonce_ok')
            a(f'v_or_b32 v{vFL}, s{sXCC}, v{vN}')
            a(f'v_mov_b32 v{vFL+1}, v{vN+1}')
            a(f's_mov_b32 s7, {WS_FA}')
            a('s_mov_b64 exec, 1')
            a(f'buffer_store_dwordx2 {V(vFL,2)}, v{vFA}, {S(WS_)}, s7 offen')
            a('s_mov_b64 exec, -1')
            ts(4)
    ACCB = 96
    AF = 128
    BF = 176
    BALT = 208
    AD = 216
    FET = 220
    a(f'v_lshlrev_b32 v{vT2}, 3, v{vT1}')
    a(f'v_add_u32 v{vT2}, v{vT2}, v{vT0}')
    a(f'v_sub_u32 v{vT2}, 15, v{vT2}')
    a(f'v_and_b32 v{vT3}, 1, v{vT2}')
    a(f'v_lshlrev_b32 v{vT3}, 4, v{vT3}')
    a(f'v_lshlrev_b32 v{vT3}, v{vT3}, v{vD}')
    a(f'v_ashrrev_i32 v{vT2}, 1, v{vT2}')
    for jd in range(4):
        a(f'v_cmp_eq_u32 vcc, {jd}, v{vT2}')
        a(f'v_cndmask_b32 v{AD+jd}, 0, v{vT3}, vcc')
    a(f's_mov_b32 s{sCNT}, 0')
    a(f's_mov_b32 s{sMODE}, 1')
    a(f's_mov_b32 s7, {WS_FA}')
    a(f's_mov_b32 s8, {WS_FB}')
    if cfg.force_slow:
        a('s_branch L_c_slow')
    a.label('L_c_poll')
    a(f'buffer_load_dwordx2 {V(vP,2)}, v{vPA}, {S(WS_)}, s7 offen sc1')
    a('s_waitcnt vmcnt(0)')
    a(f'v_cmp_eq_u64 vcc, {V(vP,2)}, {V(vFL,2)}')
    a('s_cmp_eq_u64 vcc, exec')
    a('s_cbranch_scc1 L_c_fetch')
    a(f's_add_u32 s{sCNT}, s{sCNT}, 1')
    a('s_sleep 1')
    a(f's_cmp_lt_u32 s{sCNT}, {cfg.n1}')
    a('s_cbranch_scc1 L_c_poll')
    a.label('L_c_slow')
    srd_off(a, SCR_, P_WS, WS_KB, 0x400000)
    for ch in range(4):
        a(f'buffer_store_dwordx4 {V(KVP+4*ch,4)}, v{vS}, {S(SCR_)}, 0 offen{off(soff[ch])} sc1')
    a('s_waitcnt vmcnt(0)')
    a('s_mov_b64 exec, 1')
    a(f'buffer_store_dwordx2 {V(vFL,2)}, v{vFA}, {S(WS_)}, s8 offen sc1')
    a('s_mov_b64 exec, -1')
    a.label('L_c_poll2')
    a('s_sleep 8')
    a(f'buffer_load_dwordx2 {V(vP,2)}, v{vPA}, {S(WS_)}, s7 offen sc1')
    a(f'buffer_load_dwordx2 {V(vP+2,2)}, v{vPA}, {S(WS_)}, s8 offen sc1')
    a('s_waitcnt vmcnt(0)')
    if not cfg.force_slow:
        a(f'v_cmp_eq_u64 vcc, {V(vP,2)}, {V(vFL,2)}')
        a('s_cmp_eq_u64 vcc, exec')
        a('s_cbranch_scc1 L_c_fast_again')
    a(f'v_cmp_eq_u64 s[12:13], {V(vP+2,2)}, {V(vFL,2)}')
    a(f'v_and_b32 v{vP+2}, -16, v{vP+2}')
    a(f'v_cmp_eq_u64 vcc, {V(vP+2,2)}, {V(vN,2)}')
    a('s_cmp_eq_u64 vcc, exec')
    a('s_cbranch_scc1 L_c_slow_ok')
    a(f's_add_u32 s{sCNT}, s{sCNT}, 1')
    a(f's_cmp_lt_u32 s{sCNT}, {BIG}')
    a('s_cbranch_scc1 L_c_poll2')
    a.label('L_c_slow_ok')
    if cfg.force_slow:
        a(f's_mov_b32 s{sMODE}, 0')
    else:
        a('s_cmp_eq_u64 s[12:13], exec')
        a(f's_cselect_b32 s{sMODE}, 1, 0')
    a('s_branch L_c_fetch')
    a.label('L_c_fast_again')
    srd(a, SCR_, P_OUT, 0x400000)
    a.label('L_c_fetch')
    ts(5)
    mo = ['0', f's{s1m}', f's{s2m}', f's{s3m}']
    for it in range(4):
        a(f'buffer_load_dwordx4 {V(FET+4*it,4)}, v{vF}, {S(SCR_)}, {mo[it]} offen sc1')
    def ldA(cp, extra=0):
        o = 512 * cp + extra
        a(f'ds_read_b64 {V(AF+4*cp,2)}, v{vAa} offset:{o}')
        a(f'ds_read_b64 {V(AF+4*cp+2,2)}, v{vAa} offset:{o+8}')
    def breg(e, par):
        return (BALT + 4 * e) if (e < 2 and par) else BF + 4 * e
    def ldB(e, par, extra=0):
        a(f'ds_read_b128 {V(breg(e,par),4)}, v{vBa} offset:{3584-512*e+extra}')
    for cp in range(7, -1, -1):
        ldA(cp)
    a(f's_cmp_eq_u32 s{sMODE}, 1')
    a('s_cbranch_scc1 L_c_scr_out')
    a('s_waitcnt vmcnt(0)')
    srd_off(a, SCR_, P_WS, WS_YB, 0x400000)
    a('s_branch L_c_scr_done')
    a.label('L_c_scr_out')
    a('s_waitcnt vmcnt(0)')
    srd(a, SCR_, P_OUT, 0x400000)
    a.label('L_c_scr_done')
    ts(6)
    for it in range(4):
        a(f'ds_write_b128 v{vU}, {V(FET+4*it,4)} offset:{3072-1024*it}')
    for e in range(8):
        ldB(e, 0)
    QT, ST = 16, 32
    for r in range(8):
        so, io = rowoff[r]
        a(f'buffer_load_dwordx2 {V(QT+2*r,2)}, v{vC}, {S(Q_)}, {so} offen{off(io)}{cfg.pol_in}')
    for e in range(8):
        a(f's_waitcnt lgkmcnt({7-e})')
        a(f'v_mfma_f32_16x16x32_bf16 {V(ACCB+4*e,4)}, {V(AD,4)}, {V(BF+4*e,4)}, 0')
    a(f's_mov_b32 s{sCNT}, 0')
    def mf(cp, e, par):
        nt = cp + e
        a(f'v_mfma_f32_16x16x32_bf16 {V(ACCB+4*nt,4)}, {V(AF+4*cp,4)}, {V(breg(e,par),4)}, {V(ACCB+4*nt,4)}')
    a.label('L_conv')
    for par in (0, 1):
        nx = 64 * (par + 1)
        issued = 0
        for cp in range(7, -1, -1):
            for e in range(0, 8 - cp):
                if e == 7 - cp and e >= 2 and cp >= 1:
                    n = (7 - e) + 2 + issued
                    a(f's_waitcnt lgkmcnt({min(n,15)})')
                if cp == 7 and e == 0:
                    a('s_waitcnt lgkmcnt(8)')
                if cp == 0 and e == 0:
                    a(f's_waitcnt lgkmcnt({min(issued,15)})')
                mf(cp, e, par)
                if cp == 0 and e >= 2:
                    ldB(e, 1 - par, nx); issued += 1
            ldA(cp, nx); issued += 2
            if cp == 4:
                ldB(0, 1 - par, nx); ldB(1, 1 - par, nx); issued += 2
    a(f'v_add_u32 v{vAa}, 128, v{vAa}')
    a(f'v_add_u32 v{vBa}, 128, v{vBa}')
    a(f's_add_u32 s{sCNT}, s{sCNT}, 1')
    a(f's_cmp_lt_u32 s{sCNT}, 4')
    a('s_cbranch_scc1 L_conv', noflush=True)
    a('s_waitcnt lgkmcnt(0)')
    ts(7)
    YP = 128
    for nt in range(8):
        a(f'v_cvt_pk_bf16_f32 v{YP+2*nt}, v{ACCB+4*nt}, v{ACCB+4*nt+1}')
        a(f'v_cvt_pk_bf16_f32 v{YP+2*nt+1}, v{ACCB+4*nt+2}, v{ACCB+4*nt+3}')
    for p in range(4):
        a(f'v_permlane16_swap_b32 v{YP+4*p}, v{YP+4*p+2}')
        a(f'v_permlane16_swap_b32 v{YP+4*p+1}, v{YP+4*p+3}')
    a(f's_lshl_b32 s7, s{sCH}, 3')
    a(f's_add_u32 s7, s7, {WS_FY}')
    a(f'v_mov_b32 v{vT3}, 0')
    a('s_lshl_b32 s8, s5, 9')
    a(f's_lshl_b32 s12, s{sHR}, 8')
    a('s_add_u32 s8, s8, s12')
    a(f's_add_u32 s8, s8, {WS_STAT}')
    a(f'v_lshlrev_b32 v{vT2}, 6, v{vT1}')
    a(f's_cmp_eq_u32 s{sMODE}, 1')
    a('s_cbranch_scc0 L_c_ysl')
    for sc in ('', ' sc1'):
        for p in range(4):
            a(f'buffer_store_dwordx4 {V(YP+4*p,4)}, v{vY}, {S(SCR_)}, {mo[p]} offen{sc}')
        a('s_waitcnt vmcnt(0)')
        a('s_mov_b64 exec, 1')
        a(f'buffer_store_dwordx2 {V(vN,2)}, v{vT3}, {S(WS_)}, s7 offen{sc}')
        a('s_mov_b64 exec, -1')
        if sc == '':
            a('s_branch L_c_ydone')
            a.label('L_c_ysl')
    a.label('L_c_ydone')
    ts(8)
    vN2 = 48
    a(f'v_add_co_u32 v{vN2}, vcc, 0x4000000, v{vN}')
    a(f'v_addc_co_u32 v{vN2+1}, vcc, 0, v{vN+1}, vcc')
    a(f's_mov_b32 s{sCNT}, 0')
    a.label('L_c_stat')
    for i in range(4):
        a(f'buffer_load_dwordx4 {V(ST+4*i,4)}, v{vT2}, {S(WS_)}, s8 offen{off(16*i)} sc1')
    a('s_waitcnt vmcnt(0)')
    a('s_mov_b64 s[12:13], exec')
    for i in range(4):
        a(f'v_cmp_ge_u64 vcc, {V(ST+4*i+2,2)}, {V(vN,2)}')
        a('s_and_b64 s[12:13], s[12:13], vcc')
        a(f'v_cmp_lt_u64 vcc, {V(ST+4*i+2,2)}, {V(vN2,2)}')
        a('s_and_b64 s[12:13], s[12:13], vcc')
    a('s_cmp_eq_u64 s[12:13], exec')
    a('s_cbranch_scc1 L_c_stat_ok')
    a(f's_add_u32 s{sCNT}, s{sCNT}, 1')
    a('s_sleep 4')
    a(f's_cmp_lt_u32 s{sCNT}, {BIG}')
    a('s_cbranch_scc1 L_c_stat')
    a.label('L_c_stat_ok')
    MM, INV = 52, 60
    XF, XN, XNP, T1P, YR = 96, 128, 160, 176, 192
    FT = 208
    for r in range(8):
        sr = ST + 4 * (r >> 1) + (r & 1)
        a(f'v_and_b32 v{MM+r}, 0xffff0000, v{sr}')
        a(f'v_lshlrev_b32 v{INV+r}, 16, v{sr}')
        a(f'v_rcp_f32 v{INV+r}, v{INV+r}')
    for r in range(8):
        for h in (0, 1):
            x = XF + 4 * r + 2 * h
            unpack(x, x + 1, QT + 2 * r + h)
    for r in range(8):
        for h in (0, 1):
            x = XF + 4 * r + 2 * h; n = XN + 4 * r + 2 * h
            a(f'v_sub_f32 v{n}, v{x}, v{MM+r}')
            a(f'v_sub_f32 v{n+1}, v{x+1}, v{MM+r}')
        for h in (0, 1):
            n = XN + 4 * r + 2 * h
            round2(n, FT + h)
        for h in (0, 1):
            n = XN + 4 * r + 2 * h
            a(f'v_mul_f32 v{n}, v{n}, v{INV+r}')
            a(f'v_mul_f32 v{n+1}, v{n+1}, v{INV+r}')
        for h in (0, 1):
            n = XN + 4 * r + 2 * h
            round2(n, XNP + 2 * r + h)
    ts(9)
    a('s_lshl_b32 s7, s4, 10')
    a(f's_lshl_b32 s8, s{sHC}, 9')
    a('s_add_u32 s7, s7, s8')
    a(f's_add_u32 s7, s7, {WS_FY}')
    a(f'v_lshlrev_b32 v{vT2}, 3, v0')
    a(f's_mov_b32 s{sCNT}, 0')
    a.label('L_c_polly')
    a(f'buffer_load_dwordx2 {V(vP,2)}, v{vT2}, {S(WS_)}, s7 offen sc1')
    a('s_waitcnt vmcnt(0)')
    a(f'v_cmp_eq_u64 vcc, {V(vP,2)}, {V(vN,2)}')
    a('s_cmp_eq_u64 vcc, exec')
    a('s_cbranch_scc1 L_c_yok')
    a(f's_add_u32 s{sCNT}, s{sCNT}, 1')
    a('s_sleep 1')
    a(f's_cmp_lt_u32 s{sCNT}, {BIG}')
    a('s_cbranch_scc1 L_c_polly')
    a.label('L_c_yok')
    ts(10)
    for ch in range(4):
        a(f'buffer_load_dwordx4 {V(YR+4*ch,4)}, v{vS}, {S(SCR_)}, 0 offen{off(soff[ch])} sc1')
    a(f'v_mov_b32 v{vT3}, {L_SEL}')
    a(f's_mov_b32 s{sCNT}, 0')
    a.label('L_c_sel')
    a(f'ds_read_b128 {V(FT,4)}, v{vT3}')
    a('s_waitcnt lgkmcnt(0)')
    a(f'v_cmp_ne_u64 vcc, 0, {V(FT+2,2)}')
    a('s_cbranch_vccnz L_c_sel_ok')
    a(f's_add_u32 s{sCNT}, s{sCNT}, 1')
    a('s_sleep 2')
    a(f's_cmp_lt_u32 s{sCNT}, {BIG*4}')
    a('s_cbranch_scc1 L_c_sel')
    a.label('L_c_sel_ok')
    a(f'v_readfirstlane_b32 s14, v{FT}')
    a(f'v_readfirstlane_b32 s15, v{FT+1}')
    a('s_waitcnt vmcnt(0)')
    ts(11)
    OP = 16
    for rp in range(4):
        Y0, Y1 = FT, FT + 4
        for ch in range(4):
            unpack(Y0 + ch, Y1 + ch, YR + 4 * ch + rp)
        un = [(2 * rp, 0, Y0), (2 * rp, 1, Y0 + 2), (2 * rp + 1, 0, Y1), (2 * rp + 1, 1, Y1 + 2)]
        for r, h, y in un:
            pk('v_pk_mul_f32', y, y, XN + 4 * r + 2 * h)
        for i, (r, h, y) in enumerate(un):
            round2(y, FT + 8 + i)
        for r, h, y in un:
            pk('v_pk_add_f32', y, y, XF + 4 * r + 2 * h)
        for r, h, y in un:
            round2(y, T1P + 2 * r + h)
        for r, h, y in un:
            pk('v_pk_add_f32', y, y, XN + 4 * r + 2 * h)
        for r, h, y in un:
            a(f'v_cvt_pk_bf16_f32 v{OP+2*r+h}, v{y}, v{y+1}')
        for r in (2 * rp, 2 * rp + 1):
            so, io = rowoff[r]
            a(f'buffer_store_dwordx2 {V(OP+2*r,2)}, v{vC}, {S(OUT_)}, {so} offen{off(io)}{cfg.pol_out}')
    ts(12)
    a('s_and_b32 s14, s14, 0x7ff')
    a('s_sub_u32 s14, 2047, s14')
    a('s_and_b32 s15, s15, 0x7ff')
    a('s_sub_u32 s15, 2047, s15')
    a('s_lshl_b32 s12, s5, 1')
    a(f's_add_u32 s12, s12, s{sHR}')
    a('s_lshr_b32 s7, s14, 5')
    a('s_lshr_b32 s8, s15, 5')
    a('s_cmp_eq_u32 s7, s12')
    a('s_cbranch_scc1 L_c_spec')
    a('s_cmp_eq_u32 s8, s12')
    a('s_cbranch_scc0 L_c_done')
    a.label('L_c_spec')
    a(f'v_lshlrev_b32 v{vT2}, 10, v{vT1}')
    a(f'v_lshl_add_u32 v{vT2}, v{vT0}, 3, v{vT2}')
    a(f'v_add_u32 v{vT2}, s10, v{vT2}')
    for r in range(8):
        a(f'ds_write_b64 v{vT2}, {V(T1P+2*r,2)} offset:{128*r}')
        a(f'ds_write_b64 v{vT2}, {V(XNP+2*r,2)} offset:{4096+128*r}')
    a('s_waitcnt vmcnt(0) lgkmcnt(0)')
    for tok in (0, 1):
        sidx = 14 + tok
        a(f's_lshr_b32 s7, s{sidx}, 5')
        a('s_cmp_eq_u32 s7, s12')
        a(f's_cbranch_scc0 L_c_spec_skip{tok}')
        a(f'v_mov_b32 v{vT3}, {L_CNT+12+4*tok}')
        a(f's_mov_b32 s{sCNT}, 0')
        a.label(f'L_c_upd{tok}')
        a(f'ds_read_b32 v{FT}, v{vT3}')
        a('s_waitcnt lgkmcnt(0)')
        a(f'v_cmp_le_u32 vcc, 4, v{FT}')
        a(f's_cbranch_vccnz L_c_upd_ok{tok}')
        a(f's_add_u32 s{sCNT}, s{sCNT}, 1')
        a('s_sleep 1')
        a(f's_cmp_lt_u32 s{sCNT}, {BIG*8}')
        a(f's_cbranch_scc1 L_c_upd{tok}')
        a.label(f'L_c_upd_ok{tok}')
        a(f'v_and_b32 v{vT2}, 31, v0')
        a(f's_and_b32 s7, s{sidx}, 31')
        a('s_lshl_b32 s7, s7, 7')
        a('s_add_u32 s7, s7, s10')
        a(f'v_lshlrev_b32 v{vT3}, 2, v{vT2}')
        a(f'v_add_u32 v{FT+8}, s7, v{vT3}')
        a(f'ds_read_b32 v{FT}, v{FT+8}')
        a(f'ds_read_b32 v{FT+1}, v{FT+8} offset:4096')
        a(f's_lshl_b32 s7, s{sHC}, 8')
        a(f's_add_u32 s7, s7, {L_UPD+512*tok}')
        a(f'v_lshlrev_b32 v{FT+9}, 3, v{vT2}')
        a(f'v_add_u32 v{FT+9}, s7, v{FT+9}')
        a(f'ds_read_b64 {V(FT+2,2)}, v{FT+9}')
        a('s_waitcnt lgkmcnt(0)')
        unpack(FT + 4, FT + 5, FT)
        unpack(FT + 6, FT + 7, FT + 1)
        pk('v_pk_add_f32', FT + 6, FT + 6, FT + 2)
        round2(FT + 6, FT + 1)
        pk('v_pk_add_f32', FT + 4, FT + 4, FT + 6)
        a(f'v_cvt_pk_bf16_f32 v{FT}, v{FT+4}, v{FT+5}')
        a(f's_lshl_b32 s7, s{sidx}, 11')
        a('s_lshl_b32 s8, s4, 8')
        a('s_add_u32 s7, s7, s8')
        a(f's_lshl_b32 s8, s{sHC}, 7')
        a('s_add_u32 s7, s7, s8')
        a(f'buffer_store_dword v{FT}, v{vT3}, {S(OUT_)}, s7 offen')
        a.label(f'L_c_spec_skip{tok}')
    a.label('L_c_done')
    ts(13)
    ts_store(WS_)
    a('s_endpgm')

    a.hist = []
    a.label('L_M')
    Q_, WR_, WG_, DN_, WS_, DBG_ = range(44, 68, 4)
    sMW, sKQ, sMAT, sFB, sCNT, sI0, sI1, sLAST = 68, 69, 70, 71, 72, 73, 74, 75
    sT = 76
    vQ, vM, vG, vT0, vT1, vT2, vT3 = 2, 3, 4, 5, 6, 7, 8
    vN = 10; vN2 = 12
    QR, WRR = 16, 32
    X, WF = 40, 72
    R_ = 88
    GW = 104
    DW = 168
    MK = 196
    BFm = 200
    ACC = 208
    STG = 212
    XD = 216
    GT = 232
    a(f's_sub_u32 s{sMW}, s3, 4')
    a('s_lshl_b32 s6, s2, 14')
    a(f's_lshl_b32 s7, s{sMW}, 12')
    a('s_add_u32 s6, s6, s7')
    a(f'v_lshlrev_b32 v{vQ}, 4, v0')
    a(f'v_and_b32 v{vM}, 15, v0')
    a(f'v_lshrrev_b32 v{vG}, 4, v0')
    a('s_waitcnt lgkmcnt(0)')
    ts(0)
    srd(a, Q_, P_Q, 0x400000)
    for i in range(4):
        a(f'buffer_load_dwordx4 {V(QR+4*i,4)}, v{vQ}, {S(Q_)}, s6 offen{off(1024*i)}{cfg.pol_in}')
    srd(a, DBG_, P_DBG, 256)
    a(f's_add_u32 s7, s2, s{sMW}')
    a('s_cmp_eq_u32 s7, 0')
    a('s_cbranch_scc0 L_m_nononce')
    a('s_memrealtime s[8:9]')
    a('s_waitcnt lgkmcnt(0)')
    a('s_and_b32 s8, s8, -16')
    a(f'v_mov_b32 v{vN}, s8')
    a(f'v_mov_b32 v{vN+1}, s9')
    a(f'v_mov_b32 v{vT0}, 0')
    a('s_mov_b64 exec, 1')
    a(f'buffer_store_dwordx2 {V(vN,2)}, v{vT0}, {S(DBG_)}, 0 offen sc1')
    a('s_mov_b64 exec, -1')
    a.label('L_m_nononce')
    srd(a, WR_, P_WR, 2048)
    a(f'buffer_load_dwordx4 {V(WRR,4)}, v{vQ}, {S(WR_)}, 0 offen')
    a(f'buffer_load_dwordx4 {V(WRR+4,4)}, v{vQ}, {S(WR_)}, 0 offen offset:1024')
    srd(a, WS_, P_WS, 0x10000000)
    srd(a, DN_, P_DN, 3584 * 2048)
    a(f's_and_b32 s{sKQ}, s2, 3')
    a('s_lshr_b32 s7, s2, 2')
    a(f's_and_b32 s{sMAT}, s7, 1')
    a(f's_lshr_b32 s{sFB}, s7, 1')
    a(f's_cmp_eq_u32 s{sMAT}, 0')
    a(f's_cselect_b32 s{WG_}, s{P_G}, s{P_U}')
    a(f's_cselect_b32 s{WG_+1}, s{P_G+1}, s{P_U+1}')
    a(f's_and_b32 s{WG_+1}, s{WG_+1}, 0xffff')
    a(f's_mov_b32 s{WG_+2}, {1024*7168}')
    a(f's_mov_b32 s{WG_+3}, 0x20000')
    a(f'v_mov_b32 v{vT0}, 0')
    a(f'v_and_b32 v{vT1}, 31, v0')
    a(f'v_lshlrev_b32 v{vT1}, 2, v{vT1}')
    a(f'v_add_u32 v{vT1}, {L_M}, v{vT1}')
    a(f'ds_write_b32 v{vT1}, v{vT0}')
    a(f'v_and_b32 v{vT0}, 7, v0')
    a(f'v_and_b32 v{vT1}, 1, v0')
    a(f'v_lshlrev_b32 v{vT1}, 4, v{vT1}')
    a(f'v_mov_b32 v{vT2}, 0xffff')
    a(f'v_lshlrev_b32 v{vT1}, v{vT1}, v{vT2}')
    a(f'v_lshrrev_b32 v{vT0}, 1, v{vT0}')
    for jd in range(4):
        a(f'v_cmp_eq_u32 vcc, {jd}, v{vT0}')
        a(f'v_cndmask_b32 v{MK+jd}, 0, v{vT1}, vcc')
    a('s_waitcnt lgkmcnt(0)')
    a('s_barrier')
    a('s_waitcnt vmcnt(0)')
    ts(1)
    for row in range(2):
        for i in range(8):
            unpack(X + 16 * row + 2 * i, X + 16 * row + 2 * i + 1, QR + 8 * row + i)
    for i in range(8):
        unpack(WF + 2 * i, WF + 2 * i + 1, WRR + i)
    for row in range(2):
        pk('v_pk_add_f32', R_ + 2 * row, X + 16 * row, X + 16 * row + 2)
    for i in range(2, 8):
        for row in range(2):
            pk('v_pk_add_f32', R_ + 2 * row, R_ + 2 * row, X + 16 * row + 2 * i)
    for row in range(2):
        a(f'v_add_f32 v{R_+4+row}, v{R_+2*row}, v{R_+2*row+1}')
    wave_reduce('v_add_f32', [R_ + 4, R_ + 5], [R_ + 6, R_ + 7])
    for row in range(2):
        a(f'v_mul_f32 v{R_+4+row}, 0x3a800000, v{R_+4+row}')
    for i in range(16):
        for row in range(2):
            a(f'v_sub_f32 v{R_+row}, v{X+16*row+i}, v{R_+4+row}')
        for row in range(2):
            if i == 0: a(f'v_mul_f32 v{R_+8+row}, v{R_+row}, v{R_+row}')
            else: a(f'v_fmac_f32 v{R_+8+row}, v{R_+row}, v{R_+row}')
    wave_reduce('v_add_f32', [R_ + 8, R_ + 9], [R_ + 6, R_ + 7])
    for row in range(2):
        a(f'v_mul_f32 v{R_+8+row}, 0x3a800000, v{R_+8+row}')
    round2(R_ + 8, R_ + 6)
    round2(R_ + 4, R_ + 7)
    for row in range(2):
        a(f'v_add_f32 v{R_+8+row}, 0x3727c5ac, v{R_+8+row}')
    round2(R_ + 8, R_ + 6)
    for row in range(2):
        a(f'v_sqrt_f32 v{R_+8+row}, v{R_+8+row}')
    round2(R_ + 8, R_ + 6)
    for row in range(2):
        a(f'v_rcp_f32 v{R_+10+row}, v{R_+8+row}')
    for row in range(2):
        a(f'v_lshrrev_b32 v{STG+row}, 16, v{R_+8+row}')
        a(f'v_or_b32 v{STG+row}, v{STG+row}, v{R_+4+row}')
    for i in range(8):
        for row in range(2):
            x = X + 16 * row + 2 * i
            a(f'v_sub_f32 v{x}, v{x}, v{R_+4+row}')
            a(f'v_sub_f32 v{x+1}, v{x+1}, v{R_+4+row}')
        for row in range(2):
            round2(X + 16 * row + 2 * i, R_ + row)
        for row in range(2):
            x = X + 16 * row + 2 * i
            a(f'v_mul_f32 v{x}, v{x}, v{R_+10+row}')
            a(f'v_mul_f32 v{x+1}, v{x+1}, v{R_+10+row}')
        for row in range(2):
            round2(X + 16 * row + 2 * i, R_ + row)
        for row in range(2):
            x = X + 16 * row + 2 * i
            if i == 0: pk('v_pk_mul_f32', R_ + 12 + 2 * row, x, WF + 2 * i)
            else: pk('v_pk_fma_f32', R_ + 12 + 2 * row, x, WF + 2 * i, R_ + 12 + 2 * row)
    for row in range(2):
        a(f'v_add_f32 v{R_+row}, v{R_+12+2*row}, v{R_+13+2*row}')
    a(f's_memrealtime s[{sT}:{sT+1}]')
    wave_reduce('v_add_f32', [R_, R_ + 1], [R_ + 6, R_ + 7])
    round2(R_, R_ + 6)
    a('s_lshl_b32 s7, s2, 3')
    a(f's_lshl_b32 s8, s{sMW}, 1')
    a('s_add_u32 s7, s7, s8')
    a('s_sub_u32 s8, 2047, s7')
    a('s_sub_u32 s9, 2046, s7')
    for row in range(2):
        r = R_ + row
        a(f'v_ashrrev_i32 v{R_+2}, 31, v{r}')
        a(f'v_or_b32 v{R_+2}, 0x80000000, v{R_+2}')
        a(f'v_xor_b32 v{r}, v{r}, v{R_+2}')
        a(f'v_and_b32 v{r}, 0xffff0000, v{r}')
        a(f'v_or_b32 v{r}, s{8+row}, v{r}')
    a('s_waitcnt lgkmcnt(0)')
    a(f'v_mov_b32 v{STG+2}, s{sT}')
    a(f'v_mov_b32 v{STG+3}, s{sT+1}')
    a('s_lshl_b32 s12, s7, 3')
    a(f's_add_u32 s12, s12, {WS_STAT}')
    a(f'v_mov_b32 v{vT0}, 0')
    a(f's_lshl_b32 s8, s{sMW}, 3')
    a(f's_add_u32 s8, s8, {L_KEYS}')
    a(f'v_mov_b32 v{vT1}, s8')
    a(f'v_mov_b32 v{vT2}, {L_CNT}')
    a(f'v_mov_b32 v{vT3}, 1')
    a('s_mov_b64 exec, 1')
    a(f'ds_write_b64 v{vT1}, {V(R_,2)}')
    a(f'buffer_store_dwordx4 {V(STG,4)}, v{vT0}, {S(WS_)}, s12 offen sc1')
    a('s_waitcnt lgkmcnt(0)')
    a(f'ds_add_rtn_u32 v{R_+2}, v{vT2}, v{vT3}')
    a('s_waitcnt lgkmcnt(0)')
    a('s_mov_b64 exec, -1')
    a(f'v_readfirstlane_b32 s{sLAST}, v{R_+2}')
    ts(2)
    a(f's_cmp_eq_u32 s{sLAST}, 3')
    a('s_cbranch_scc0 L_m_waitsel')
    KG = GT
    a(f'v_mov_b32 v{vT1}, {L_KEYS}')
    a(f'ds_read_b128 {V(R_,4)}, v{vT1}')
    a(f'ds_read_b128 {V(R_+4,4)}, v{vT1} offset:16')
    a('s_waitcnt lgkmcnt(0)')
    def top2(m1, m2, keys):
        a(f'v_max_u32 v{m1}, v{keys[0]}, v{keys[1]}')
        a(f'v_min_u32 v{m2}, v{keys[0]}, v{keys[1]}')
        for kx in keys[2:]:
            a(f'v_med3_u32 v{m2}, v{m1}, v{m2}, v{kx}')
            a(f'v_max_u32 v{m1}, v{m1}, v{kx}')
    top2(KG, KG + 1, [R_ + i for i in range(8)])
    a(f'v_mov_b32 v{KG+2}, s{sT}')
    a(f'v_mov_b32 v{KG+3}, s{sT+1}')
    a('s_lshl_b32 s13, s2, 4')
    a('s_mov_b64 exec, 1')
    a(f'buffer_store_dwordx4 {V(KG,4)}, v{vT0}, {S(WS_)}, s13 offen sc1')
    a('s_mov_b64 exec, -1')
    a('s_waitcnt vmcnt(0)')
    a('s_sleep 6')
    a(f's_mov_b32 s{sCNT}, 0')
    G4 = X
    a.label('L_m_gather')
    a(f'buffer_load_dwordx2 {V(vN,2)}, v{vT0}, {S(DBG_)}, 0 offen sc1')
    for i in range(4):
        a(f'buffer_load_dwordx4 {V(G4+4*i,4)}, v{vQ}, {S(WS_)}, 0 offen{off(1024*i)} sc1')
    a('s_waitcnt vmcnt(0)')
    a(f'v_cmp_ne_u64 vcc, 0, {V(vN,2)}')
    a('s_cbranch_vccz L_m_gather_next')
    a(f'v_cmp_ge_u64 vcc, {V(KG+2,2)}, {V(vN,2)}')
    a('s_cbranch_vccnz L_m_gather_chk')
    a(f'v_mov_b32 v{KG+2}, v{vN}')
    a(f'v_mov_b32 v{KG+3}, v{vN+1}')
    a('s_mov_b64 exec, 1')
    a(f'buffer_store_dwordx4 {V(KG,4)}, v{vT0}, {S(WS_)}, s13 offen sc1')
    a('s_mov_b64 exec, -1')
    a.label('L_m_gather_chk')
    a(f'v_add_co_u32 v{vN2}, vcc, 0x4000000, v{vN}')
    a(f'v_addc_co_u32 v{vN2+1}, vcc, 0, v{vN+1}, vcc')
    a('s_mov_b64 s[8:9], exec')
    for i in range(4):
        a(f'v_cmp_ge_u64 vcc, {V(G4+4*i+2,2)}, {V(vN,2)}')
        a('s_and_b64 s[8:9], s[8:9], vcc')
        a(f'v_cmp_lt_u64 vcc, {V(G4+4*i+2,2)}, {V(vN2,2)}')
        a('s_and_b64 s[8:9], s[8:9], vcc')
    a('s_cmp_eq_u64 s[8:9], exec')
    a('s_cbranch_scc1 L_m_gather_ok')
    a.label('L_m_gather_next')
    a(f's_add_u32 s{sCNT}, s{sCNT}, 1')
    a('s_sleep 4')
    a(f's_cmp_lt_u32 s{sCNT}, {BIG}')
    a('s_cbranch_scc1 L_m_gather')
    a(f'v_or_b32 v{vN}, 16, v{vN}')
    a.label('L_m_gather_ok')
    top2(R_, R_ + 1, [G4 + 4 * i + h for i in range(4) for h in range(2)])
    a(f'v_mov_b32 v{R_+4}, v{R_}')
    wave_reduce('v_max_u32', [R_ + 4], [R_ + 6])
    a(f'v_cmp_eq_u32 vcc, v{R_}, v{R_+4}')
    a(f'v_cndmask_b32 v{R_+5}, v{R_}, v{R_+1}, vcc')
    wave_reduce('v_max_u32', [R_ + 5], [R_ + 6])
    a(f'v_mov_b32 v{R_+6}, v{vN}')
    a(f'v_mov_b32 v{R_+7}, v{vN+1}')
    a(f'v_mov_b32 v{vT1}, {L_SEL}')
    a('s_mov_b64 exec, 1')
    a(f'ds_write_b128 v{vT1}, {V(R_+4,4)}')
    a('s_mov_b64 exec, -1')
    a('s_waitcnt lgkmcnt(0)')
    a.label('L_m_waitsel')
    a('s_cmp_ge_u32 s2, 224')
    a('s_cbranch_scc1 L_m_noGload')
    a(f's_lshl_b32 s7, s{sKQ}, 8')
    a(f's_lshl_b32 s8, s{sMW}, 6')
    a('s_add_u32 s7, s7, s8')
    a('s_mul_i32 s7, s7, 7168')
    a(f's_lshl_b32 s8, s{sFB}, 8')
    a('s_add_u32 s7, s7, s8')
    a(f'v_mul_u32_u24 v{vT1}, {16*7168}, v{vG}')
    a(f'v_lshl_add_u32 v{vT1}, v{vM}, 4, v{vT1}')
    for t in range(16):
        a(f'buffer_load_dwordx4 {V(GW+4*t,4)}, v{vT1}, {S(WG_)}, s7 offen{cfg.pol_w}')
        if t < 15: a('s_add_u32 s7, s7, 7168')
    a.label('L_m_noGload')
    a('s_mul_i32 s7, s5, 112')
    a(f's_mul_i32 s8, s{sMW}, 28')
    a('s_add_u32 s14, s7, s8')
    a('s_lshl_b32 s7, s14, 11')
    a('s_lshl_b32 s8, s4, 8')
    a('s_add_u32 s7, s7, s8')
    a(f'v_lshlrev_b32 v{vT1}, 11, v{vG}')
    a(f'v_lshl_add_u32 v{vT1}, v{vM}, 4, v{vT1}')
    for t in range(7):
        a(f'buffer_load_dwordx4 {V(DW+4*t,4)}, v{vT1}, {S(DN_)}, s7 offen{cfg.pol_w}')
        if t < 6: a('s_add_u32 s7, s7, 8192')
    a(f'v_mov_b32 v{vT1}, {L_SEL}')
    a(f's_mov_b32 s{sCNT}, 0')
    a.label('L_m_sel')
    a(f'ds_read_b128 {V(R_,4)}, v{vT1}')
    a('s_waitcnt lgkmcnt(0)')
    a(f'v_cmp_ne_u64 vcc, 0, {V(R_+2,2)}')
    a('s_cbranch_vccnz L_m_sel_ok')
    a(f's_add_u32 s{sCNT}, s{sCNT}, 1')
    a('s_sleep 2')
    a(f's_cmp_lt_u32 s{sCNT}, {BIG*8}')
    a('s_cbranch_scc1 L_m_sel')
    a.label('L_m_sel_ok')
    ts(3)
    a(f'v_mov_b32 v{vN}, v{R_+2}')
    a(f'v_mov_b32 v{vN+1}, v{R_+3}')
    a(f'v_readfirstlane_b32 s{sI0}, v{R_}')
    a(f'v_readfirstlane_b32 s{sI1}, v{R_+1}')
    a(f'v_add_co_u32 v{vN2}, vcc, 0x4000000, v{vN}')
    a(f'v_addc_co_u32 v{vN2+1}, vcc, 0, v{vN+1}, vcc')
    a(f'v_cmp_ge_u64 vcc, {V(STG+2,2)}, {V(vN,2)}')
    a('s_cbranch_vccnz L_m_stat_ok')
    a(f'v_mov_b32 v{STG+2}, v{vN}')
    a(f'v_mov_b32 v{STG+3}, v{vN+1}')
    a('s_mov_b64 exec, 1')
    a(f'buffer_store_dwordx4 {V(STG,4)}, v{vT0}, {S(WS_)}, s12 offen sc1')
    a('s_mov_b64 exec, -1')
    a.label('L_m_stat_ok')
    a('s_cmp_ge_u32 s2, 224')
    a('s_cbranch_scc1 L_m_noG')
    a(f'v_cmp_le_u32 vcc, 8, v{vM}')
    a(f'v_cndmask_b32 v{R_+4}, v{R_}, v{R_+1}, vcc')
    a(f'v_and_b32 v{R_+4}, 0x7ff, v{R_+4}')
    a(f'v_sub_u32 v{R_+4}, 2047, v{R_+4}')
    a(f'v_lshlrev_b32 v{vT1}, 11, v{R_+4}')
    a(f'v_lshl_add_u32 v{vT1}, v{vG}, 5, v{vT1}')
    a(f's_lshl_b32 s7, s{sKQ}, 9')
    a(f's_lshl_b32 s8, s{sMW}, 7')
    a('s_add_u32 s7, s7, s8')
    a(f'buffer_load_dwordx4 {V(X,4)}, v{vT1}, {S(Q_)}, s7 offen')
    a(f'buffer_load_dwordx4 {V(X+4,4)}, v{vT1}, {S(Q_)}, s7 offen offset:16')
    a(f'v_lshrrev_b32 v{vT2}, 1, v{R_+4}')
    a(f'v_lshlrev_b32 v{vT2}, 4, v{vT2}')
    a(f's_mov_b32 s7, {WS_STAT}')
    a(f's_mov_b32 s{sCNT}, 0')
    a.label('L_m_xstat')
    a(f'buffer_load_dwordx4 {V(X+8,4)}, v{vT2}, {S(WS_)}, s7 offen sc1')
    a('s_waitcnt vmcnt(0)')
    a(f'v_cmp_ge_u64 s[8:9], {V(X+10,2)}, {V(vN,2)}')
    a(f'v_cmp_lt_u64 vcc, {V(X+10,2)}, {V(vN2,2)}')
    a('s_and_b64 s[8:9], s[8:9], vcc')
    a('s_cmp_eq_u64 s[8:9], exec')
    a('s_cbranch_scc1 L_m_xstat_ok')
    a(f's_add_u32 s{sCNT}, s{sCNT}, 1')
    a('s_sleep 4')
    a(f's_cmp_lt_u32 s{sCNT}, {BIG}')
    a('s_cbranch_scc1 L_m_xstat')
    a.label('L_m_xstat_ok')
    ts(4)
    a(f'v_and_b32 v{vT2}, 1, v{R_+4}')
    a(f'v_cmp_eq_u32 vcc, 1, v{vT2}')
    a(f'v_cndmask_b32 v{vT2}, v{X+8}, v{X+9}, vcc')
    a(f'v_and_b32 v{R_+5}, 0xffff0000, v{vT2}')
    a(f'v_lshlrev_b32 v{R_+6}, 16, v{vT2}')
    a(f'v_rcp_f32 v{R_+6}, v{R_+6}')
    for i in range(8):
        x = X + 12 + 2 * (i & 1)
        unpack(x, x + 1, X + i)
        a(f'v_sub_f32 v{x}, v{x}, v{R_+5}')
        a(f'v_sub_f32 v{x+1}, v{x+1}, v{R_+5}')
        round2(x, R_ + 7)
        a(f'v_mul_f32 v{x}, v{x}, v{R_+6}')
        a(f'v_mul_f32 v{x+1}, v{x+1}, v{R_+6}')
        a(f'v_cvt_pk_bf16_f32 v{XD+2*i}, v{x}, v{x}')
        a(f'v_cvt_pk_bf16_f32 v{XD+2*i+1}, v{x+1}, v{x+1}')
    def onehot_mfma(wbase, xd, n):
        for t in range(n):
            b = BFm + 4 * (t & 1)
            for jd in range(4):
                a(f'v_and_b32 v{b+jd}, v{MK+jd}, v{xd+t}')
            cin = '0' if t == 0 else V(ACC, 4)
            a(f'v_mfma_f32_16x16x32_bf16 {V(ACC,4)}, {V(wbase+4*t,4)}, {V(b,4)}, {cin}')
    onehot_mfma(GW, XD, 16)
    def red_write(cnt_idx, base):
        a(f's_lshl_b32 s7, s{sMW}, 10')
        a(f's_add_u32 s7, s7, {base}')
        a(f'v_add_u32 v{vT1}, s7, v{vQ}')
        a(f'ds_write_b128 v{vT1}, {V(ACC,4)}')
        a(f'v_mov_b32 v{vT2}, {L_CNT+4*cnt_idx}')
        a(f'v_mov_b32 v{vT3}, 1')
        a('s_waitcnt lgkmcnt(0)')
        a('s_mov_b64 exec, 1')
        a(f'ds_add_rtn_u32 v{R_+2}, v{vT2}, v{vT3}')
        a('s_waitcnt lgkmcnt(0)')
        a('s_mov_b64 exec, -1')
        a(f'v_readfirstlane_b32 s{sLAST}, v{R_+2}')
    red_write(1, L_RED)
    a(f's_cmp_eq_u32 s{sLAST}, 3')
    a('s_cbranch_scc0 L_m_noG')
    a(f'v_lshrrev_b32 v{vT1}, 5, v0')
    a(f'v_lshlrev_b32 v{vT1}, 8, v{vT1}')
    a(f'v_and_b32 v{vT2}, 7, v0')
    a(f'v_lshl_add_u32 v{vT1}, v{vT2}, 4, v{vT1}')
    a(f'v_bfe_u32 v{vT2}, v0, 3, 2')
    a(f'v_lshl_add_u32 v{vT1}, v{vT2}, 2, v{vT1}')
    a(f'v_add_u32 v{vT1}, {L_RED}, v{vT1}')
    for h in range(2):
        for tok in range(2):
            for sl in range(4):
                a(f'ds_read_b32 v{X+8*h+4*tok+sl}, v{vT1} offset:{512*h+128*tok+1024*sl}')
    a('s_waitcnt lgkmcnt(0)')
    for h in range(2):
        for tok in range(2):
            b = X + 8 * h + 4 * tok
            a(f'v_add_f32 v{b}, v{b}, v{b+1}')
            a(f'v_add_f32 v{b+2}, v{b+2}, v{b+3}')
            a(f'v_add_f32 v{GT+4*h+tok}, v{b}, v{b+2}')
        a(f'v_mov_b32 v{GT+4*h+2}, v{vN}')
        a(f'v_mov_b32 v{GT+4*h+3}, v{vN+1}')
    a(f's_lshl_b32 s7, s{sMAT}, 2')
    a(f's_add_u32 s7, s7, s{sKQ}')
    a('s_mul_i32 s7, s7, 3584')
    a(f's_lshl_b32 s8, s{sFB}, 7')
    a('s_add_u32 s7, s7, s8')
    a('s_lshl_b32 s7, s7, 4')
    a(f's_add_u32 s7, s7, {WS_PRE}')
    a(f'buffer_store_dwordx4 {V(GT,4)}, v{vQ}, {S(WS_)}, s7 offen sc1')
    a(f'buffer_store_dwordx4 {V(GT+4,4)}, v{vQ}, {S(WS_)}, s7 offen offset:1024 sc1')
    a.label('L_m_noG')
    a('s_waitcnt vmcnt(0)')
    ts(5)
    a(f'v_lshrrev_b32 v{vT1}, 1, v0')
    a(f'v_min_u32 v{vT1}, 27, v{vT1}')
    a(f'v_and_b32 v{vT2}, 1, v0')
    a(f'v_mul_u32_u24 v{vT2}, {4*3584}, v{vT2}')
    a(f'v_add_u32 v{vT2}, v{vT2}, v{vT1}')
    a(f'v_lshlrev_b32 v{vT2}, 4, v{vT2}')
    a('s_lshl_b32 s7, s14, 4')
    a(f's_add_u32 s7, s7, {WS_PRE}')
    a(f's_add_u32 s8, s7, {3584*16}')
    a(f's_add_u32 s9, s7, {2*3584*16}')
    a(f's_add_u32 s13, s7, {3*3584*16}')
    a(f's_mov_b32 s{sCNT}, 0')
    a.label('L_m_pre')
    a('s_sleep 4')
    for kq, sr in enumerate((7, 8, 9, 13)):
        a(f'buffer_load_dwordx4 {V(X+4*kq,4)}, v{vT2}, {S(WS_)}, s{sr} offen sc1')
    a('s_waitcnt vmcnt(0)')
    a(f'v_cmp_eq_u64 s[10:11], {V(X+2,2)}, {V(vN,2)}')
    for kq in range(1, 4):
        a(f'v_cmp_eq_u64 vcc, {V(X+4*kq+2,2)}, {V(vN,2)}')
        a('s_and_b64 s[10:11], s[10:11], vcc')
    a('s_cmp_eq_u64 s[10:11], exec')
    a('s_cbranch_scc1 L_m_pre_ok')
    a(f's_add_u32 s{sCNT}, s{sCNT}, 1')
    a(f's_cmp_lt_u32 s{sCNT}, {BIG}')
    a('s_cbranch_scc1 L_m_pre')
    a.label('L_m_pre_ok')
    ts(6)
    pk('v_pk_add_f32', X, X, X + 4)
    pk('v_pk_add_f32', X + 8, X + 8, X + 12)
    pk('v_pk_add_f32', X, X, X + 8)
    round2(X, X + 4)
    for tok in range(2):
        a(f'v_mul_f32 v{X+4+tok}, 0xbfb8aa3b, v{X+tok}')
    for tok in range(2):
        a(f'v_exp_f32 v{X+4+tok}, v{X+4+tok}')
    for tok in range(2):
        a(f'v_add_f32 v{X+4+tok}, 1.0, v{X+4+tok}')
    for tok in range(2):
        a(f'v_rcp_f32 v{X+4+tok}, v{X+4+tok}')
    for tok in range(2):
        a(f'v_mul_f32 v{X+4+tok}, v{X+4+tok}, v{X+tok}')
    round2(X + 4, X + 6)
    for tok in range(2):
        a(f'v_mul_f32_dpp v{X+8+tok}, v{X+tok}, v{X+4+tok} quad_perm:[1,0,3,2] row_mask:0xf bank_mask:0xf')
    for tok in range(2):
        a(f'v_cvt_pk_bf16_f32 v{X+8+tok}, v{X+8+tok}, v{X+8+tok}')
    a(f'v_and_b32 v{vT2}, 3, v{vT1}')
    a(f'v_lshlrev_b32 v{vT2}, 5, v{vT2}')
    a(f'v_lshrrev_b32 v{vT3}, 2, v{vT1}')
    a(f'v_lshl_add_u32 v{vT2}, v{vT3}, 2, v{vT2}')
    a(f's_lshl_b32 s7, s{sMW}, 8')
    a(f's_add_u32 s7, s7, {L_H}')
    a(f'v_add_u32 v{vT2}, s7, v{vT2}')
    a('s_mov_b32 s8, 0x55555555')
    a('s_mov_b32 s9, 0x55555555')
    a('s_mov_b64 exec, s[8:9]')
    a(f'ds_write_b32 v{vT2}, v{X+8}')
    a(f'ds_write_b32 v{vT2}, v{X+9} offset:128')
    a('s_mov_b64 exec, -1')
    a(f'v_lshrrev_b32 v{vT2}, 3, v{vM}')
    a(f'v_lshlrev_b32 v{vT2}, 7, v{vT2}')
    a(f'v_lshl_add_u32 v{vT2}, v{vG}, 5, v{vT2}')
    a(f'v_add_u32 v{vT2}, s7, v{vT2}')
    a(f'ds_read_b128 {V(XD,4)}, v{vT2}')
    a(f'ds_read_b128 {V(XD+4,4)}, v{vT2} offset:16')
    a('s_waitcnt lgkmcnt(0)')
    onehot_mfma(DW, XD, 7)
    red_write(2, L_RED2)
    a(f's_cmp_eq_u32 s{sLAST}, 3')
    a('s_cbranch_scc0 L_m_noDpub')
    a(f'v_lshrrev_b32 v{vT1}, 4, v0')
    a(f'v_lshlrev_b32 v{vT1}, 8, v{vT1}')
    a(f'v_and_b32 v{vT2}, 3, v0')
    a(f'v_lshl_add_u32 v{vT1}, v{vT2}, 5, v{vT1}')
    a(f'v_bfe_u32 v{vT2}, v0, 2, 2')
    a(f'v_lshl_add_u32 v{vT1}, v{vT2}, 2, v{vT1}')
    a(f'v_add_u32 v{vT1}, {L_RED2}, v{vT1}')
    for tok in range(2):
        for e in range(2):
            for sl in range(4):
                a(f'ds_read_b32 v{X+8*tok+4*e+sl}, v{vT1} offset:{128*tok+16*e+1024*sl}')
    a('s_waitcnt lgkmcnt(0)')
    for tok in range(2):
        for e in range(2):
            b = X + 8 * tok + 4 * e
            a(f'v_add_f32 v{b}, v{b}, v{b+1}')
            a(f'v_add_f32 v{b+2}, v{b+2}, v{b+3}')
            a(f'v_add_f32 v{GT+4*tok+e}, v{b}, v{b+2}')
        a(f'v_mov_b32 v{GT+4*tok+2}, v{vN}')
        a(f'v_mov_b32 v{GT+4*tok+3}, v{vN+1}')
    a('s_lshl_b32 s7, s4, 6')
    a('s_add_u32 s7, s7, s5')
    a('s_lshl_b32 s7, s7, 10')
    a(f's_add_u32 s7, s7, {WS_DP}')
    a('s_add_u32 s8, s7, 32768')
    a(f'buffer_store_dwordx4 {V(GT,4)}, v{vQ}, {S(WS_)}, s7 offen sc1')
    a(f'buffer_store_dwordx4 {V(GT+4,4)}, v{vQ}, {S(WS_)}, s8 offen sc1')
    a('s_waitcnt vmcnt(0)')
    a.label('L_m_noDpub')
    ts(7)
    for tok in range(2):
        sk = sI0 + tok
        a(f's_and_b32 s7, s{sk}, 0x7ff')
        a('s_sub_u32 s7, 2047, s7')
        a('s_lshr_b32 s7, s7, 6')
        a('s_cmp_eq_u32 s7, s5')
        a(f's_cbranch_scc0 L_m_upd_skip{tok}')
        a('s_lshl_b32 s7, s4, 16')
        a(f's_add_u32 s7, s7, {WS_DP + 32768*tok}')
        a(f's_lshl_b32 s8, s{sMW}, 8')
        a('s_add_u32 s7, s7, s8')
        a('s_add_u32 s8, s7, 4096')
        a(f'v_lshlrev_b32 v{vT1}, 13, v{vG}')
        a(f'v_lshl_add_u32 v{vT1}, v{vM}, 4, v{vT1}')
        a(f's_mov_b32 s{sCNT}, 0')
        a.label(f'L_m_dp{tok}')
        a('s_sleep 4')
        for i in range(8):
            a(f'buffer_load_dwordx4 {V(X+4*i,4)}, v{vT1}, {S(WS_)}, s{7+(i>>2)} offen{off(1024*(i&3))} sc1')
        a('s_waitcnt vmcnt(0)')
        a(f'v_cmp_eq_u64 s[10:11], {V(X+2,2)}, {V(vN,2)}')
        for i in range(1, 8):
            a(f'v_cmp_eq_u64 vcc, {V(X+4*i+2,2)}, {V(vN,2)}')
            a('s_and_b64 s[10:11], s[10:11], vcc')
        a('s_cmp_eq_u64 s[10:11], exec')
        a(f's_cbranch_scc1 L_m_dp_ok{tok}')
        a(f's_add_u32 s{sCNT}, s{sCNT}, 1')
        a(f's_cmp_lt_u32 s{sCNT}, {BIG}')
        a(f's_cbranch_scc1 L_m_dp{tok}')
        a.label(f'L_m_dp_ok{tok}')
        for i in range(0, 8, 2):
            pk('v_pk_add_f32', X + 4 * i, X + 4 * i, X + 4 * i + 4)
        pk('v_pk_add_f32', X, X, X + 8)
        pk('v_pk_add_f32', X + 16, X + 16, X + 24)
        pk('v_pk_add_f32', X, X, X + 16)
        cross_rows('v_add_f32', [X, X + 1], [X + 4, X + 5])
        round2(X, X + 4)
        a(f's_and_b32 s7, s{sk}, 0xffff0000')
        a('s_ashr_i32 s8, s7, 31')
        a('s_not_b32 s8, s8')
        a('s_or_b32 s8, s8, 0x80000000')
        a('s_xor_b32 s7, s7, s8')
        a('s_and_b32 s7, s7, 0xffff0000')
        a(f'v_mov_b32 v{X+4}, s7')
        a(f'v_mul_f32 v{X+4}, 0xbfb8aa3b, v{X+4}')
        a(f'v_exp_f32 v{X+4}, v{X+4}')
        a(f'v_add_f32 v{X+4}, 1.0, v{X+4}')
        a(f'v_rcp_f32 v{X+4}, v{X+4}')
        round1(X + 4)
        a(f'v_mul_f32 v{X}, v{X}, v{X+4}')
        a(f'v_mul_f32 v{X+1}, v{X+1}, v{X+4}')
        round2(X, X + 4)
        a(f's_lshl_b32 s7, s{sMW}, 7')
        a(f's_add_u32 s7, s7, {L_UPD+512*tok}')
        a(f'v_lshlrev_b32 v{vT1}, 3, v{vM}')
        a(f'v_add_u32 v{vT1}, s7, v{vT1}')
        a(f'ds_write_b64 v{vT1}, {V(X,2)}')
        a(f'v_mov_b32 v{vT2}, {L_CNT+12+4*tok}')
        a(f'v_mov_b32 v{vT3}, 1')
        a('s_waitcnt lgkmcnt(0)')
        a('s_mov_b64 exec, 1')
        a(f'ds_add_u32 v{vT2}, v{vT3}')
        a('s_mov_b64 exec, -1')
        a('s_waitcnt lgkmcnt(0)')
        a.label(f'L_m_upd_skip{tok}')
    ts(8)
    ts_store(WS_)
    a.label('L_end')
    a('s_endpgm')

    ref = open('cdna_kernels/%s.s.ref' % NAME).read()
    head = ref[:ref.index('; @launch')]
    out = head + f'; @launch grid=(256,1,1) block=(512,1,1) lds={LDS_BYTES}\n'
    out += '.amdgcn_target "amdgcn-amd-amdhsa--gfx950"\n.text\n'
    out += f'.globl {NAME}_kernel\n.p2align 8\n.type {NAME}_kernel,@function\n'
    out += a.text()
    out += f'''.section .rodata,"a"
.p2align 6
.amdhsa_kernel {NAME}_kernel
  .amdhsa_next_free_vgpr 256
  .amdhsa_next_free_sgpr 102
  .amdhsa_accum_offset 256
  .amdhsa_group_segment_fixed_size 0
  .amdhsa_kernarg_size 112
  .amdhsa_user_sgpr_count 2
  .amdhsa_user_sgpr_kernarg_segment_ptr 1
  .amdhsa_system_sgpr_workgroup_id_x 1
  .amdhsa_float_denorm_mode_32 3
.end_amdhsa_kernel
'''
    return out, a.count

if __name__ == '__main__':
    cfg = Cfg()
    outp = 'cdna_kernels/%s.s' % NAME
    for arg in sys.argv[1:]:
        k, v = arg.split('=', 1)
        if k == 'out': outp = v
        else:
            cur = getattr(cfg, k)
            if isinstance(cur, bool): v = v in ('1', 'True', 'true')
            elif isinstance(cur, int): v = int(v)
            elif isinstance(cur, str): v = (' ' + v.replace('+', ' ')) if v else ''
            setattr(cfg, k, v)
    text, n = gen(cfg)
    open(outp, 'w').write(text)
    print('wrote', outp, n, 'instructions')
```

```python
import re

REG_RE = re.compile(r'^(-|abs\()?([vsa])(\d+)\)?$')
RNG_RE = re.compile(r'^(-)?([vsa])\[(\d+):(\d+)\]$')

def parse_regs(op):
    op = op.strip()
    if op.startswith('|') and op.endswith('|'):
        op = op[1:-1]
    m = REG_RE.match(op)
    if m:
        return [(m.group(2), int(m.group(3)))]
    m = RNG_RE.match(op)
    if m:
        return [(m.group(2), i) for i in range(int(m.group(3)), int(m.group(4)) + 1)]
    if op == 'vcc':
        return [('s', 106), ('s', 107)]
    if op == 'vcc_lo':
        return [('s', 106)]
    if op == 'vcc_hi':
        return [('s', 107)]
    if op == 'exec':
        return [('s', 126), ('s', 127)]
    if op == 'm0':
        return [('s', 124)]
    return []

TRANS = ('v_exp_f32', 'v_log_f32', 'v_rcp_f32', 'v_rsq_f32', 'v_sqrt_f32', 'v_sin_f32', 'v_cos_f32')

class Ins:
    def __init__(self, text):
        self.text = text
        t = text.split(';')[0].strip()
        parts = t.split(None, 1)
        self.mn = parts[0]
        rest = parts[1] if len(parts) > 1 else ''
        ops, cur, depth = [], '', 0
        for ch in rest:
            if ch == '[':
                depth += 1
            if ch == ']':
                depth -= 1
            if ch == ',' and depth == 0:
                ops.append(cur.strip()); cur = ''
            else:
                cur += ch
        if cur.strip():
            ops.append(cur.strip())
        self.mods = ''
        if ops:
            sp = ops[-1].split(None, 1)
            ops[-1] = sp[0]
            if len(sp) > 1:
                self.mods = sp[1]
        self.ops = ops
        mn = self.mn
        self.is_mfma = mn.startswith('v_mfma')
        self.is_valu = mn.startswith('v_') and not self.is_mfma
        self.is_ds = mn.startswith('ds_')
        self.is_vmem = mn.startswith('buffer_') or mn.startswith('global_')
        self.is_salu = mn.startswith('s_')
        self.is_dpp = ('_dpp' in mn) or ('quad_perm' in self.mods) or ('row_' in self.mods) or ('wave_' in self.mods)
        self.is_trans = mn.split('_e')[0] in TRANS or mn in TRANS
        self.is_permlane = mn.startswith('v_permlane')
        self.is_readlane = mn.startswith('v_readlane') or mn.startswith('v_readfirstlane')
        self.dst, self.src = [], []
        R = [parse_regs(o) for o in ops]
        if self.is_mfma:
            self.dst = R[0]; self.srcA = R[1]; self.srcB = R[2]; self.srcC = R[3]
            self.src = R[1] + R[2] + R[3]
        elif self.is_valu:
            if self.is_permlane:
                self.dst = R[0] + R[1]; self.src = R[0] + R[1]
            elif re.match(r'v_(add|sub|subrev|addc|subb|subbrev)_co_', mn) or mn.startswith('v_mad_u64') or mn.startswith('v_div_scale'):
                self.dst = R[0] + R[1]; self.src = sum(R[2:], [])
            else:
                self.dst = R[0]; self.src = sum(R[1:], [])
                if mn.startswith('v_fmac') or mn.startswith('v_dot2c') or mn.startswith('v_writelane') or self.is_dpp or 'sdwa' in mn:
                    self.src = self.src + R[0]
                if mn.startswith('v_cndmask') and len(ops) == 3:
                    self.src += [('s', 106), ('s', 107)]
                if mn.startswith('v_cmpx'):
                    self.dst = self.dst + [('s', 126), ('s', 127)]
        elif self.is_ds:
            if mn.startswith('ds_read') or 'rtn' in mn or mn.startswith('ds_bpermute') or mn.startswith('ds_permute') or mn.startswith('ds_swizzle'):
                self.dst = R[0]; self.src = sum(R[1:], [])
            else:
                self.src = sum(R, [])
        elif self.is_vmem:
            if '_load' in mn and ' lds' not in (' ' + self.mods):
                self.dst = R[0]; self.src = sum(R[1:], [])
            else:
                self.src = sum(R, [])
            self.wide_store = ('store_dwordx4' in mn or 'store_dwordx3' in mn)
            if self.wide_store:
                self.store_data = R[0] if mn.startswith('buffer_') else R[1]
        elif self.is_salu:
            if mn.startswith('s_cmp') or mn.startswith('s_cbranch') or mn in ('s_branch', 's_waitcnt', 's_nop', 's_barrier', 's_endpgm', 's_sleep', 's_setprio', 's_bitcmp1_b32', 's_bitcmp0_b32'):
                self.src = sum(R, [])
            else:
                self.dst = R[0] if R else []
                self.src = sum(R[1:], [])
    def states(self):
        if self.mn == 's_nop':
            return int(self.ops[0], 0) + 1
        return 1

def mfma_passes(mn):
    if '32x32x16' in mn or '32x32x8' in mn:
        return 8
    if '16x16x32' in mn or '16x16x16' in mn:
        return 4
    raise ValueError(mn)

def need(p, c):
    n = 0
    pd, cs, cd = set(p.dst), set(c.src), set(c.dst)
    if p.is_valu:
        vd = {r for r in pd if r[0] in 'va'}
        sd = {r for r in pd if r[0] == 's'}
        if vd & cs:
            if c.is_mfma: n = max(n, 2)
            if c.is_valu and c.is_dpp: n = max(n, 2)
            if c.is_permlane: n = max(n, 2)
            if c.is_readlane: n = max(n, 1)
            if p.is_trans and c.is_valu: n = max(n, 1)
            if ('sdwa' in p.mn or 'op_sel' in p.mods) and c.is_valu and not p.mn.startswith('v_pk_'): n = max(n, 1)
        if sd & cs:
            if c.is_vmem: n = max(n, 5)
            if c.is_valu: n = max(n, 4 if (c.is_readlane or c.mn.startswith('v_writelane')) else 2)
            if c.is_mfma: n = max(n, 4)
            if c.is_salu: n = max(n, 1)
        if ('s', 126) in sd:
            if c.is_valu and (c.is_dpp): n = max(n, 5)
            if c.is_mfma or c.is_readlane or c.is_permlane: n = max(n, 4)
        if (('s', 106) in sd or ('s', 126) in sd) and c.mn.startswith('s_cbranch_vcc'):
            n = max(n, 1)
    if p.is_valu and p.mn.startswith('v_dot'):
        if pd & (cs | cd):
            if c.mn == p.mn and len(c.ops) == 4 and not (pd & set(parse_regs(c.ops[1]) + parse_regs(c.ops[2]))):
                pass
            else:
                n = max(n, 3)
    if p.is_mfma:
        ps = mfma_passes(p.mn)
        big = {4: 8, 8: 12}[ps]
        if c.is_mfma:
            if pd & set(c.srcA + c.srcB): n = max(n, big)
            if pd & set(c.srcC):
                if p.dst == c.srcC and mfma_passes(c.mn) == ps: pass
                else: n = max(n, {4: 6, 8: 10}[ps])
            elif pd & cd:
                n = max(n, big)
        else:
            if pd & (cs | cd): n = max(n, big)
            if c.is_valu and set(p.srcC) & cd: n = max(n, {4: 3, 8: 7}[ps])
    if p.is_vmem and getattr(p, 'wide_store', False):
        if set(p.store_data) & cd: n = max(n, 2)
    if p.is_salu and ('s', 124) in pd and (c.is_vmem and 'lds' in c.mods): n = max(n, 1)
    return n

def worst(p):
    if p.is_mfma: return {4: 8, 8: 12}[mfma_passes(p.mn)]
    if p.is_valu:
        if any(r[0] == 's' for r in p.dst): return 5
        if p.mn.startswith('v_dot'): return 3
        return 2
    if p.is_vmem and getattr(p, 'wide_store', False): return 2
    return 0

class Asm:
    def __init__(self):
        self.lines = []
        self.hist = []
        self.count = 0
    def raw(self, t):
        self.lines.append(t)
    def comment(self, t):
        self.lines.append('    ; ' + t)
    def _emit(self, ins):
        st = ins.states()
        self.hist = [(p, d + st) for (p, d) in self.hist if d + st < 13]
        self.hist.append((ins, 0))
        self.lines.append('    ' + ins.text)
        self.count += 1
    def nop(self, n):
        while n > 0:
            k = min(n, 16)
            self._emit(Ins('s_nop %d' % (k - 1)))
            n -= k
    def flush(self):
        n = 0
        for p, d in self.hist:
            n = max(n, worst(p) - d)
        self.nop(n)
        self.hist = []
    def __call__(self, text, noflush=False):
        for t in text.split('\n'):
            t = t.strip()
            if not t or t.startswith(';'):
                continue
            ins = Ins(t)
            n = 0
            for p, d in self.hist:
                n = max(n, need(p, ins) - d)
            if (ins.mn.startswith('s_cbranch') or ins.mn == 's_branch') and not noflush:
                for p, d in self.hist:
                    n = max(n, worst(p) - d - 1)
            self.nop(n)
            self._emit(ins)
    def label(self, name, noflush=False):
        self.lines.append(name + ':')
    def text(self):
        return '\n'.join(self.lines) + '\n'
```

```python
import sys, os
from asmlib import Asm

NAME = 'parallel_sum__ssm_conv_h3__moe_arch_mod__prompt'

class Cfg:
    ts = False
    exact_ks = 0
    pol = ''
    n1 = 40
    force_slow = False
    gsleep = 40
    presleep = 8
    pre0 = 0
    prio = 1
    mprio = 2
    cpf = 32
    hsmode = 2
    wpre = 10
    cfirst = 6
    lsleep = 0
    lstart = 16
    noconv = 0
    wearly = 0
    prewait = 4
    gpub = 1
    lpre = 12
    prepack = 1
    order = 0
    xnfast = 1
    pt = 1
    ysleep = 0
    dpsleep = 0
    ymask = 0
    tord = 1
    hse = 1
    pollat = 1
    cpre = 0
    dly = 0
    gretry = 2
    polpt = ''
    polh = ''
    peel = 1
    yprog = 0
    lowmid = 1
    sched = 1
    gfirst = 0
    cearly = 0
    lat0 = 0
    polout = ''
    wb = 0
    qfirst = 0
    qtpre = 0
    pearly = 8
    dnlin = 0
    tw = 0
    bal = 0
    dnpre = 0
    spec = 1
    specat = 1
    marg = 3
    wsl = 1
    dyn = 0
    polw = ' nt'
    xgate = 1

WS_KEY = 0x0
WS_STAT = 0x2000
WS_FY = 0x6000
WS_FA = 0x8000
WS_FB = 0xC000
WS_PRE = 0x10000
WS_DP = 0x80000
WS_KB = 0x400000
WS_YB = 0x800000
WS_TS = 0x1000000
TSTR = 4160
TABW = 4 * TSTR
USTR = 4608
C_KEY, C_G, C_DN, C_XRDY, C_GATE, C_TRIG, C_PUB, C_MODE = range(8)
C_XT = 8
C_ST = 12
C_GT = 40
L_SEL = 64
L_KEYS = 96
L_STS = 128
ZERO_BYTES = 256
L_RG = 256
L_RD = L_RG + 4096
L_H = L_RD + 4096
L_XD = L_H + 1024
L_XT = L_XD + 2048
XTW = 4096 + 2048
L_U = L_XT + 4 * XTW
L_TAB = L_U + 4 * USTR
LDS_BYTES = L_TAB + 4 * TABW + 256
assert L_U % 16 == 0 and L_TAB % 16 == 0 and L_XT % 16 == 0
BIG = 60000

def srd(a, d, ptr, size):
    a(f's_mov_b32 s{d}, s{ptr}')
    a(f's_and_b32 s{d+1}, s{ptr+1}, 0xffff')
    a(f's_mov_b32 s{d+2}, {size}')
    a(f's_mov_b32 s{d+3}, 0x20000')
def srd_off(a, d, ptr, off, size):
    a(f's_add_u32 s{d}, s{ptr}, {off}')
    a(f's_addc_u32 s{d+1}, s{ptr+1}, 0')
    a(f's_and_b32 s{d+1}, s{d+1}, 0xffff')
    a(f's_mov_b32 s{d+2}, {size}')
    a(f's_mov_b32 s{d+3}, 0x20000')
def S(d): return f's[{d}:{d+3}]'
def V(b, n): return f'v[{b}:{b+n-1}]' if n > 1 else f'v{b}'
def off(o): return f' offset:{o}' if o else ''
P_Q, P_K, P_V, P_SH, P_HK, P_D, P_BX, P_WR, P_G, P_U, P_DN, P_OUT, P_DBG, P_WS = range(16, 44, 2)
VTS = 255

def gen(cfg):
    a = Asm()
    uid = [0]
    NT = cfg.pol
    vZ, vONE = 1, 13
    def ts(slot):
        if not cfg.ts: return
        a('s_memrealtime s[100:101]')
        a('s_waitcnt lgkmcnt(0)')
        a(f'v_writelane_b32 v{VTS}, s100, {slot}')
        if slot not in (7, 8): return
        a('s_memtime s[100:101]')
        a('s_waitcnt lgkmcnt(0)')
        a(f'v_writelane_b32 v{VTS}, s100, {slot+32}')
    def ts_store(srd_ws, wadd):
        if not cfg.ts: return
        a('s_lshl_b32 s100, s2, 3')
        a('s_add_u32 s100, s100, s3')
        if wadd: a(f's_add_u32 s100, s100, {wadd}')
        a('s_lshl_b32 s100, s100, 8')
        a(f's_add_u32 s100, s100, {WS_TS}')
        a('v_lshlrev_b32 v254, 2, v0')
        a(f'buffer_store_dword v{VTS}, v254, {S(srd_ws)}, s100 offen')
    def unpack(dlo, dhi, src):
        a(f'v_lshlrev_b32 v{dlo}, 16, v{src}')
        a(f'v_and_b32 v{dhi}, 0xffff0000, v{src}')
    def round2(p, tmp):
        a(f'v_cvt_pk_bf16_f32 v{tmp}, v{p}, v{p+1}')
        unpack(p, p + 1, tmp)
    def wave_reduce(op, regs, tmps):
        for mod in ('quad_perm:[1,0,3,2]', 'quad_perm:[2,3,0,1]', 'row_half_mirror', 'row_mirror'):
            for r in regs:
                a(f'{op}_dpp v{r}, v{r}, v{r} {mod} row_mask:0xf bank_mask:0xf')
        cross_rows(op, regs, tmps)
    def cross_rows(op, regs, tmps):
        for sw in ('v_permlane16_swap_b32', 'v_permlane32_swap_b32'):
            for r, t in zip(regs, tmps): a(f'v_mov_b32 v{t}, v{r}')
            for r, t in zip(regs, tmps): a(f'{sw} v{t}, v{r}')
            for r, t in zip(regs, tmps): a(f'{op} v{r}, v{r}, v{t}')
    def pk(op, d, x, y, z=None):
        if z is None: a(f'{op} {V(d,2)}, {V(x,2)}, {V(y,2)}')
        else: a(f'{op} {V(d,2)}, {V(x,2)}, {V(y,2)}, {V(z,2)}')
    def add2(d, x, y):
        a(f'v_add_f32 v{d}, v{x}, v{y}')
        a(f'v_add_f32 v{d+1}, v{x+1}, v{y+1}')
    def lds_wait(word, minval, vtmp, scnt, vaddr=None, sleep=None):
        uid[0] += 1; u = uid[0]
        va = vZ if vaddr is None else vaddr
        if sleep is None: sleep = cfg.wsl
        a(f's_mov_b32 s{scnt}, 0')
        a.label(f'L_lw{u}')
        a(f'ds_read_b32 v{vtmp}, v{va}{off(4*word)}')
        a('s_waitcnt lgkmcnt(0)')
        a(f'v_cmp_le_u32 vcc, {minval}, v{vtmp}')
        a(f's_cbranch_vccnz L_lw{u}_ok')
        a(f's_add_u32 s{scnt}, s{scnt}, 1')
        a(f's_sleep {sleep}')
        a(f's_cmp_lt_u32 s{scnt}, {BIG*8}')
        a(f's_cbranch_scc1 L_lw{u}')
        a.label(f'L_lw{u}_ok')
    def lds_inc(word, vaddr=None):
        va = vZ if vaddr is None else vaddr
        a('s_mov_b64 exec, 1')
        a(f'ds_add_u32 v{va}, v{vONE}{off(4*word)}')
        a('s_mov_b64 exec, -1')
    def lds_ticket(word, vtmp, sdst):
        a('s_mov_b64 exec, 1')
        a(f'ds_add_rtn_u32 v{vtmp}, v{vZ}, v{vONE}{off(4*word)}')
        a('s_waitcnt lgkmcnt(0)')
        a('s_mov_b64 exec, -1')
        a(f'v_readfirstlane_b32 s{sdst}, v{vtmp}')

    s4k, s8k, s12k, s1m, s2m, s3m = 84, 85, 86, 87, 88, 89
    rowoff = [('0', 0), ('0', 2048), (f's{s4k}', 0), (f's{s4k}', 2048), (f's{s8k}', 0), (f's{s8k}', 2048), (f's{s12k}', 0), (f's{s12k}', 2048)]
    sHC, sHR = 90, 91
    vT0, vT1, vC = 9, 10, 2

    a.label(f'{NAME}_kernel')
    if cfg.ts: a('s_memrealtime s[98:99]')
    a('s_cmp_ge_u32 s2, 256')
    a('s_cbranch_scc1 L_end')
    a('s_load_dwordx16 s[16:31], s[0:1], 0')
    a('s_load_dwordx8 s[32:39], s[0:1], 64')
    a('s_load_dwordx4 s[40:43], s[0:1], 96')
    a('v_lshrrev_b32 v3, 6, v0')
    a('v_lshlrev_b32 v4, 3, v0')
    a('v_and_b32 v0, 63, v0')
    a('v_readfirstlane_b32 s15, v3')
    a(f'v_mov_b32 v{vZ}, 0')
    a('v_mov_b32 v6, 0')
    a('v_mov_b32 v7, 0')
    a(f'v_min_u32 v4, {ZERO_BYTES-8}, v4')
    a('ds_write_b64 v4, v[6:7]')
    if cfg.cpf:
        a(f's_cmp_ge_u32 s2, {cfg.cpf}')
        a('s_cbranch_scc1 L_nocpf')
        a('s_cmp_ge_u32 s15, 2')
        a('s_cbranch_scc1 L_nocpf')
        a('s_getpc_b64 s[8:9]')
        a.label('L_pc')
        a('s_lshl_b32 s7, s15, 13')
        a('v_lshlrev_b32 v252, 7, v0')
        a('v_add_u32 v252, s7, v252')
        a('v_min_u32 v252, L_code_end-L_pc-4, v252')
        a('v_mov_b32 v253, s9')
        a('v_add_co_u32 v252, vcc, s8, v252')
        a('v_addc_co_u32 v253, vcc, 0, v253, vcc')
        a('global_load_dword v251, v[252:253], off')
        a.label('L_nocpf')
    a('s_and_b32 s4, s2, 7')
    a('s_lshr_b32 s5, s2, 3')
    if cfg.ts: a(f'v_mov_b32 v{VTS}, 0')
    a('s_and_b32 s3, s15, 3')
    a(f's_and_b32 s{sHC}, s3, 1')
    a(f's_lshr_b32 s{sHR}, s3, 1')
    a('s_lshl_b32 s6, s5, 17')
    a(f's_lshl_b32 s7, s{sHR}, 16')
    a('s_add_u32 s6, s6, s7')
    a('s_lshl_b32 s7, s4, 8')
    a('s_add_u32 s6, s6, s7')
    a(f's_lshl_b32 s7, s{sHC}, 7')
    a('s_add_u32 s6, s6, s7')
    a(f'v_and_b32 v{vT0}, 15, v0')
    a(f'v_lshrrev_b32 v{vT1}, 4, v0')
    a(f'v_lshlrev_b32 v{vC}, 14, v{vT1}')
    a(f'v_lshl_add_u32 v{vC}, v{vT0}, 3, v{vC}')
    a(f'v_add_u32 v{vC}, s6, v{vC}')
    a(f'v_mov_b32 v{vONE}, 1')
    a(f's_mov_b32 s{s4k}, 4096')
    a(f's_mov_b32 s{s8k}, 8192')
    a(f's_mov_b32 s{s12k}, 12288')
    a('s_lshl_b32 s8, s2, 14')
    a('s_lshl_b32 s7, s3, 12')
    a('s_add_u32 s8, s8, s7')
    a('v_lshlrev_b32 v3, 4, v0')
    a(f'v_subrev_u32 v11, 6144, v{vC}')
    a(f'v_subrev_u32 v12, 2048, v{vC}')
    if cfg.ts:
        a('s_memrealtime s[96:97]')
    a('s_waitcnt lgkmcnt(0)')
    if cfg.ts:
        a(f'v_writelane_b32 v{VTS}, s98, 16')
        a(f'v_writelane_b32 v{VTS}, s96, 17')
        ts(18)
    if not cfg.qfirst: a('s_barrier')
    if cfg.ts: ts(19)
    if cfg.dly == 4:
        a('s_memrealtime s[100:101]')
        a('s_waitcnt lgkmcnt(0)')
        a('s_add_u32 s99, s100, 150')
        a.label('L_dly')
        a('s_sleep 1')
        a('s_memrealtime s[100:101]')
        a('s_waitcnt lgkmcnt(0)')
        a('s_sub_u32 s100, s100, s99')
        a('s_cmp_lt_i32 s100, 0')
        a('s_cbranch_scc1 L_dly')
    a('s_cmp_ge_u32 s15, 4')
    a('s_cbranch_scc1 L_C')

    Q_, WR_, WG_, DN_, WS_, DBG_, OUTM_ = range(44, 72, 4)
    sKQ, sMAT, sFB, sCNT, sI0, sI1, sLAST = 72, 73, 74, 75, 76, 77, 78
    sGO, sDO = 79, 68 + 24
    sT = 94
    vQ, vT2, vT3, vGa, vDa, vSA = 3, 5, 6, 7, 8, 11
    vM, vG = vT0, vT1
    vN = 14; vN2 = 248
    QR, WRR = 16, 32
    X = 40
    QT, ST = 16, 72
    R_ = 88
    GW = 104; DW = 168; MK = 196; BFm = 200; ACC = 208; STG = 212; XD = 216; GT = 232
    vRGa, vRDa, vHw, vHr, vDPa = 240, 241, 242, 243, 244
    srd(a, Q_, P_Q, 0x400000)
    for i in range(4):
        a(f'buffer_load_dwordx4 {V(QR+4*i,4)}, v{vQ}, {S(Q_)}, s8 offen{off(1024*i)}{NT}')
    if cfg.qfirst == 1: a('s_barrier')
    srd(a, DBG_, P_DBG, 256)
    a('s_add_u32 s7, s2, s3')
    a('s_cmp_eq_u32 s7, 0')
    a('s_cbranch_scc0 L_m_nononce')
    a('s_memrealtime s[8:9]')
    a('s_waitcnt lgkmcnt(0)')
    a('s_and_b32 s8, s8, -16')
    a(f'v_mov_b32 v{vN}, s8')
    a(f'v_mov_b32 v{vN+1}, s9')
    a('s_mov_b64 exec, 1')
    a(f'buffer_store_dwordx2 {V(vN,2)}, v{vZ}, {S(DBG_)}, 0 offen sc1')
    a('s_mov_b64 exec, -1')
    a.label('L_m_nononce')
    srd(a, WR_, P_WR, 2048)
    a(f'buffer_load_dwordx4 {V(WRR,4)}, v{vQ}, {S(WR_)}, 0 offen')
    a(f'buffer_load_dwordx4 {V(WRR+4,4)}, v{vQ}, {S(WR_)}, 0 offen offset:1024')
    if cfg.qfirst == 2: a('s_barrier')
    a('s_branch L_M2')
    part1 = a.lines; a.lines = []; a.hist = []
    a.label('L_M2')
    ts(0)
    srd(a, WS_, P_WS, 0x10000000)
    srd(a, DN_, P_DN, 3584 * 2048)
    srd(a, OUTM_, P_OUT, 0x400000)
    sG = 93
    def grole():
        a(f's_and_b32 s{sKQ}, s{sG}, 3')
        a(f's_lshr_b32 s9, s{sG}, 2')
        a(f's_and_b32 s{sMAT}, s9, 1')
        a(f's_lshr_b32 s{sFB}, s9, 1')
        a(f's_cmp_eq_u32 s{sMAT}, 0')
        a(f's_cselect_b32 s{WG_}, s{P_G}, s{P_U}')
        a(f's_cselect_b32 s{WG_+1}, s{P_G+1}, s{P_U+1}')
        a(f's_and_b32 s{WG_+1}, s{WG_+1}, 0xffff')
        a(f's_cmp_lt_u32 s{sG}, 224')
        a(f's_cselect_b32 s{WG_+2}, {1024*7168}, 0')
        a(f's_mov_b32 s{WG_+3}, 0x20000')
        a(f's_lshl_b32 s9, s{sKQ}, 8')
        a('s_lshl_b32 s8, s3, 6')
        a('s_add_u32 s9, s9, s8')
        a('s_mul_i32 s9, s9, 7168')
        a(f's_lshl_b32 s8, s{sFB}, 8')
        a(f's_add_u32 s{sGO}, s9, s8')
    def gticket(vt):
        if not cfg.dyn: return
        lds_wait(C_GT, 1, vt, sCNT)
        a(f'v_readfirstlane_b32 s{sG}, v{vt}')
        a(f's_sub_u32 s{sG}, s{sG}, 1')
        a(f's_and_b32 s{sG}, s{sG}, 0xff')
        grole()
    if not cfg.dyn:
        if cfg.bal:
            cnt = {1: [31,31,28,31,22,28,22,31], 2: [30,30,28,30,24,28,24,30], 3: [29,29,28,29,26,28,26,29], 4: [32,32,28,30,20,28,24,30]}[cfg.bal]
            assert sum(cnt) == 224
            base = [sum(cnt[:i]) for i in range(8)]
            pk8 = lambda v: (sum(x << (8 * i) for i, x in enumerate(v[:4])), sum(x << (8 * i) for i, x in enumerate(v[4:])))
            for reg, vals in ((8, cnt), (10, base)):
                lo, hi = pk8(vals)
                a(f's_mov_b32 s{reg}, {lo}')
                a(f's_mov_b32 s{reg+1}, {hi}')
            a('s_lshl_b32 s7, s4, 3')
            a('s_lshr_b64 s[8:9], s[8:9], s7')
            a('s_lshr_b64 s[10:11], s[10:11], s7')
            a('s_and_b32 s8, s8, 0xff')
            a('s_and_b32 s10, s10, 0xff')
            a(f's_add_u32 s{sG}, s10, s5')
            a('s_cmp_lt_u32 s5, s8')
            a(f's_cselect_b32 s{sG}, s{sG}, 255')
        else:
            a(f's_mov_b32 s{sG}, s2')
        grole()
    a(f'v_and_b32 v{vT2}, 7, v0')
    a(f'v_and_b32 v{vT3}, 1, v0')
    a(f'v_lshlrev_b32 v{vT3}, 4, v{vT3}')
    a(f'v_mov_b32 v{R_}, 0xffff')
    a(f'v_lshlrev_b32 v{vT3}, v{vT3}, v{R_}')
    a(f'v_lshrrev_b32 v{R_}, 1, v{vT2}')
    for jd in range(4):
        a(f'v_cmp_eq_u32 vcc, {jd}, v{R_}')
        a(f'v_cndmask_b32 v{MK+jd}, 0, v{vT3}, vcc')
    a(f'v_lshrrev_b32 v{vT3}, 3, v{vM}')
    a(f'v_lshlrev_b32 v{vRGa}, 8, v{vG}')
    a(f'v_lshl_add_u32 v{vRGa}, v{vT2}, 3, v{vRGa}')
    a(f'v_lshl_add_u32 v{vRGa}, v{vT3}, 2, v{vRGa}')
    a(f'v_lshlrev_b32 v{vRDa}, 7, v{vG}')
    a(f'v_lshl_add_u32 v{vRDa}, v{vT2}, 2, v{vRDa}')
    a(f'v_lshl_add_u32 v{vRDa}, v{vT3}, 9, v{vRDa}')
    a('s_lshl_b32 s7, s3, 10')
    a(f'v_add_u32 v{vRGa}, s7, v{vRGa}')
    a(f'v_add_u32 v{vRDa}, s7, v{vRDa}')
    a('s_lshl_b32 s7, s3, 8')
    a(f'v_lshlrev_b32 v{vHr}, 7, v{vT3}')
    a(f'v_lshl_add_u32 v{vHr}, v{vG}, 5, v{vHr}')
    a(f'v_add_u32 v{vHr}, s7, v{vHr}')
    vPRa = 245
    a(f'v_lshrrev_b32 v{R_}, 1, v0')
    a(f'v_min_u32 v{R_}, 27, v{R_}')
    a(f'v_and_b32 v{vHw}, 3, v{R_}')
    a(f'v_lshlrev_b32 v{vHw}, 5, v{vHw}')
    a(f'v_lshrrev_b32 v{R_+1}, 2, v{R_}')
    a(f'v_lshl_add_u32 v{vHw}, v{R_+1}, 2, v{vHw}')
    a(f'v_add_u32 v{vHw}, s7, v{vHw}')
    a(f'v_and_b32 v{vPRa}, 1, v0')
    a(f'v_mul_u32_u24 v{vPRa}, {4*3584}, v{vPRa}')
    a(f'v_add_u32 v{vPRa}, v{vPRa}, v{R_}')
    if cfg.prepack:
        a(f'v_lshrrev_b32 v{vPRa}, 1, v{vPRa}')
        a(f'v_and_b32 v246, 1, v{R_}')
    a(f'v_lshlrev_b32 v{vPRa}, 4, v{vPRa}')
    a(f'v_mul_u32_u24 v{vGa}, {16*7168}, v{vG}')
    a(f'v_lshl_add_u32 v{vGa}, v{vM}, 4, v{vGa}')
    a('s_mul_i32 s7, s5, 112')
    a('s_mul_i32 s8, s3, 28')
    a('s_add_u32 s14, s7, s8')
    a('s_lshl_b32 s7, s14, 11')
    a('s_lshl_b32 s8, s4, 8')
    a(f's_add_u32 s{sDO}, s7, s8')
    a(f'v_lshlrev_b32 v{vDa}, 11, v{vG}')
    a(f'v_lshl_add_u32 v{vDa}, v{vM}, 4, v{vDa}')
    if cfg.dnlin:
        a('s_lshl_b32 s7, s2, 2')
        a('s_add_u32 s7, s7, s3')
        a(f's_mul_i32 s{sDO}, s7, 7168')
        a(f'v_lshlrev_b32 v{vDa}, 4, v0')
    GB = 8 if cfg.prepack else 16
    a(f's_mul_i32 s80, s14, {GB}')
    a(f's_add_u32 s80, s80, {WS_PRE}')
    a(f's_add_u32 s81, s80, {3584*GB}')
    a(f's_add_u32 s82, s80, {2*3584*GB}')
    a(f's_add_u32 s83, s80, {3*3584*GB}')
    a('s_lshl_b32 s7, s2, 3')
    a('s_lshl_b32 s8, s3, 1')
    a('s_add_u32 s7, s7, s8')
    a('s_sub_u32 s10, 2047, s7')
    a('s_sub_u32 s11, 2046, s7')
    a(f'v_mov_b32 v{X}, 0x3f803f80')
    a('s_lshl_b32 s15, s5, 9')
    a(f's_lshl_b32 s7, s{sHR}, 8')
    a('s_add_u32 s15, s15, s7')
    a(f's_add_u32 s15, s15, {WS_STAT}')
    a(f'v_lshlrev_b32 v{vSA}, 6, v{vG}')
    a('s_lshl_b32 s7, s4, 6')
    a('s_add_u32 s7, s7, s5')
    a('s_lshl_b32 s7, s7, 10')
    a(f's_add_u32 s12, s7, {WS_DP}')
    a('s_add_u32 s13, s12, 32768')
    a(f'v_lshlrev_b32 v{vDPa}, 7, v{vT2}')
    a(f'v_lshl_add_u32 v{vDPa}, v{vT3}, 15, v{vDPa}')
    vRA = GT + 4
    a('s_lshl_b32 s7, s2, 6')
    a(f's_add_u32 s7, s7, {WS_STAT}')
    a(f'v_and_b32 v{vT2}, 3, v0')
    a(f'v_lshlrev_b32 v{vRA}, 4, v{vT2}')
    a(f'v_add_u32 v{vRA}, s7, v{vRA}')
    a('s_lshl_b32 s7, s2, 4')
    a(f'v_mov_b32 v{vT3}, s7')
    a('v_cmp_eq_u32 vcc, 4, v0')
    a(f'v_cndmask_b32 v{vRA}, v{vRA}, v{vT3}, vcc')
    a(f'v_lshlrev_b32 v{GT+5}, 3, v{vT2}')
    a('s_lshl_b32 s8, s3, 3')
    a(f'v_mov_b32 v{vT2}, s8')
    def wload(t):
        if t < 16:
            a(f'buffer_load_dwordx4 {V(GW+4*t,4)}, v{vGa}, {S(WG_)}, s{sGO} offen{cfg.polw}')
            a(f's_add_u32 s{sGO}, s{sGO}, 7168')
        else:
            a(f'buffer_load_dwordx4 {V(DW+4*(t-16),4)}, v{vDa}, {S(DN_)}, s{sDO} offen{cfg.polw}')
            a(f's_add_u32 s{sDO}, s{sDO}, {1024 if cfg.dnlin else 8192}')
    ntw = 0
    if cfg.tw:
        a('s_mov_b64 exec, 1')
        a(f'buffer_load_dword v250, v{vDa}, {S(DN_)}, s{sDO} offen'); ntw += 1
        if cfg.tw > 1:
            a(f'buffer_load_dword v250, v{vGa}, {S(WG_)}, s{sGO} offen'); ntw += 1
            a(f's_mov_b32 s7, {WS_PRE - 128}')
            a(f'buffer_load_dword v250, v{vZ}, {S(WS_)}, s7 offen'); ntw += 1
        a('s_mov_b64 exec, -1')
    if cfg.mprio: a(f's_setprio {cfg.mprio}')
    a(f's_waitcnt vmcnt({ntw})')
    ts(1)
    for i in range(8):
        for row in range(2):
            q = QR + 8 * row + i
            for k, src in ((0, f'v{X}'), (2, f'v{q}'), (4, f'v{WRR+i}')):
                c0 = '0' if i == 0 else f'v{R_+k+row}'
                a(f'v_dot2_f32_bf16 v{R_+k+row}, v{q}, {src}, {c0}')
        c0 = '0' if i == 0 else f'v{R_+6}'
        a(f'v_dot2_f32_bf16 v{R_+6}, v{WRR+i}, v{X}, {c0}')
    a(f's_memrealtime s[{sT}:{sT+1}]')
    wave_reduce('v_add_f32', [R_ + i for i in range(7)], [X + 2 + i for i in range(7)])
    for row in range(2):
        a(f'v_mul_f32 v{R_+row}, 0x3a800000, v{R_+row}')
        a(f'v_mul_f32 v{R_+2+row}, 0x3a800000, v{R_+2+row}')
    for row in range(2):
        a(f'v_fma_f32 v{R_+2+row}, -v{R_+row}, v{R_+row}, v{R_+2+row}')
        a(f'v_max_f32 v{R_+2+row}, 0, v{R_+2+row}')
    round2(R_ + 2, R_ + 8)
    round2(R_, R_ + 9)
    for row in range(2):
        a(f'v_add_f32 v{R_+2+row}, 0x3727c5ac, v{R_+2+row}')
    round2(R_ + 2, R_ + 8)
    for row in range(2):
        a(f'v_sqrt_f32 v{R_+2+row}, v{R_+2+row}')
    round2(R_ + 2, R_ + 8)
    for row in range(2):
        a(f'v_rcp_f32 v{R_+10+row}, v{R_+2+row}')
        a(f'v_fma_f32 v{R_+4+row}, -v{R_+row}, v{R_+6}, v{R_+4+row}')
    for row in range(2):
        a(f'v_lshrrev_b32 v{STG+row}, 16, v{R_+2+row}')
        a(f'v_or_b32 v{STG+row}, v{STG+row}, v{R_+row}')
        a(f'v_mul_f32 v{R_+4+row}, v{R_+4+row}, v{R_+10+row}')
    round2(R_ + 4, R_ + 8)
    for row in range(2):
        r = R_ + 4 + row
        a(f'v_ashrrev_i32 v{R_+8}, 31, v{r}')
        a(f'v_or_b32 v{R_+8}, 0x80000000, v{R_+8}')
        a(f'v_xor_b32 v{r}, v{r}, v{R_+8}')
        a(f'v_and_b32 v{r}, 0xffff0000, v{r}')
        a(f'v_or_b32 v{r}, s{10+row}, v{r}')
    a('s_mov_b64 exec, 1')
    a(f'ds_write_b64 v{vT2}, {V(R_+4,2)} offset:{L_KEYS}')
    a(f'ds_write_b64 v{vT2}, {V(STG,2)} offset:{L_STS}')
    lds_ticket(C_KEY, R_ + 2, sLAST)
    ts(2)
    a(f's_cmp_eq_u32 s{sLAST}, 3')
    a('s_cbranch_scc1 L_m_ctrl')
    if cfg.mprio: a('s_setprio 0')
    if cfg.dyn:
        a(f's_cmp_eq_u32 s{sLAST}, 0')
        a('s_cbranch_scc0 L_m_notk')
        a(f's_mov_b32 s{sG}, 1')
        a(f's_atomic_add s{sG}, s[{P_DBG}:{P_DBG+1}], 128 glc')
        a('s_waitcnt lgkmcnt(0)')
        a(f's_add_u32 s{sG}, s{sG}, 1')
        a(f'v_mov_b32 v{vT3}, s{sG}')
        a(f'ds_write_b32 v{vZ}, v{vT3} offset:{4*C_GT}')
        a.label('L_m_notk')
    gticket(vT3)
    NG = 5 if cfg.xgate else 4
    def qtl():
        for r in range(8):
            so, io = rowoff[r]
            a(f'buffer_load_dwordx2 {V(QT+2*r,2)}, v{vC}, {S(Q_)}, {so} offen{off(io)}{NT}')
    w0 = 0
    if cfg.hsmode == 2 and (cfg.wpre or cfg.dnpre):
        lds_wait(C_TRIG, 5 if cfg.gfirst else 4, vT3, sCNT)
        if cfg.qtpre: qtl()
        if cfg.dnpre:
            for t in range(16, 23): wload(t)
        for t in range(cfg.wpre): wload(t)
        w0 = cfg.wpre
    if cfg.hsmode == 3 and cfg.wearly:
        lds_wait(C_TRIG, 5, vT3, sCNT)
        for t in range(cfg.wearly): wload(t)
        w0 = cfg.wearly
    lds_wait(C_GATE, NG, vT3, sCNT)
    for t in range(w0, 16): wload(t)
    a('s_branch L_m_join')
    a.label('L_m_ctrl')
    KG = GT
    a(f'ds_read_b128 {V(R_,4)}, v{vZ} offset:{L_KEYS}')
    a(f'ds_read_b128 {V(R_+4,4)}, v{vZ} offset:{L_KEYS+16}')
    a(f'ds_read_b64 {V(R_+8,2)}, v{GT+5} offset:{L_STS}')
    a('v_cmp_eq_u32 vcc, 4, v0')
    a(f'v_mov_b32 v{KG+2}, s{sT}')
    a(f'v_mov_b32 v{KG+3}, s{sT+1}')
    a('s_waitcnt lgkmcnt(0)')
    def top2(m1, m2, keys):
        a(f'v_max_u32 v{m1}, v{keys[0]}, v{keys[1]}')
        a(f'v_min_u32 v{m2}, v{keys[0]}, v{keys[1]}')
        for kx in keys[2:]:
            a(f'v_med3_u32 v{m2}, v{m1}, v{m2}, v{kx}')
            a(f'v_max_u32 v{m1}, v{m1}, v{kx}')
    top2(KG, KG + 1, [R_ + i for i in range(8)])
    a(f'v_cndmask_b32 v{KG}, v{R_+8}, v{KG}, vcc')
    a(f'v_cndmask_b32 v{KG+1}, v{R_+9}, v{KG+1}, vcc')
    a('s_mov_b64 exec, 31')
    a(f'buffer_store_dwordx4 {V(KG,4)}, v{vRA}, {S(WS_)}, 0 offen sc1')
    a('s_mov_b64 exec, -1')
    if cfg.hsmode == 3 and cfg.wearly: lds_inc(C_TRIG)
    ts(11)
    g = cfg.gsleep
    while g > 0:
        a(f's_sleep {min(g,120)}'); g -= 120
    if cfg.dly == 3:
        a('s_memrealtime s[100:101]')
        a('s_waitcnt lgkmcnt(0)')
        a('s_add_u32 s99, s100, 150')
        a.label('L_dly')
        a('s_sleep 1')
        a('s_memrealtime s[100:101]')
        a('s_waitcnt lgkmcnt(0)')
        a('s_sub_u32 s100, s100, s99')
        a('s_cmp_lt_i32 s100, 0')
        a('s_cbranch_scc1 L_dly')
    G4 = X
    def gloads():
        a(f'buffer_load_dwordx2 {V(vN,2)}, v{vZ}, {S(DBG_)}, 0 offen sc1')
        for i in range(4):
            a(f'buffer_load_dwordx4 {V(G4+4*i,4)}, v{vQ}, {S(WS_)}, 0 offen{off(1024*i)} sc1')
    if cfg.gfirst or cfg.cearly:
        gloads()
        if cfg.gfirst: lds_inc(C_TRIG)
        if cfg.cearly:
            lds_wait(C_TRIG, 5 if cfg.gfirst else 4, R_ + 10, sCNT)
            for t in range(cfg.cearly): wload(t)
        a(f's_mov_b32 s{sCNT}, 0')
        a(f's_waitcnt vmcnt({cfg.cearly})')
        a('s_branch L_m_gather1')
    a(f's_mov_b32 s{sCNT}, 0')
    a.label('L_m_gather')
    gloads()
    a('s_waitcnt vmcnt(0)')
    a.label('L_m_gather1')
    a(f'v_cmp_ne_u64 vcc, 0, {V(vN,2)}')
    a('s_cbranch_vccz L_m_gather_next')
    a(f'v_cmp_ge_u64 vcc, {V(KG+2,2)}, {V(vN,2)}')
    a('s_cbranch_vccnz L_m_gather_chk')
    a(f'v_mov_b32 v{KG+2}, v{vN}')
    a(f'v_mov_b32 v{KG+3}, v{vN+1}')
    a('s_mov_b64 exec, 31')
    a(f'buffer_store_dwordx4 {V(KG,4)}, v{vRA}, {S(WS_)}, 0 offen sc1')
    a('s_mov_b64 exec, -1')
    a.label('L_m_gather_chk')
    a(f'v_add_co_u32 v{vN2}, vcc, 0x4000000, v{vN}')
    a(f'v_addc_co_u32 v{vN2+1}, vcc, 0, v{vN+1}, vcc')
    def win_check(regs):
        a('s_mov_b64 s[8:9], exec')
        for r in regs:
            a(f'v_cmp_ge_u64 vcc, {V(r,2)}, {V(vN,2)}')
            a('s_and_b64 s[8:9], s[8:9], vcc')
            a(f'v_cmp_lt_u64 vcc, {V(r,2)}, {V(vN2,2)}')
            a('s_and_b64 s[8:9], s[8:9], vcc')
        a('s_cmp_eq_u64 s[8:9], exec')
    win_check([G4 + 4 * i + 2 for i in range(4)])
    a('s_cbranch_scc1 L_m_gather_ok')
    a.label('L_m_gather_next')
    a(f's_add_u32 s{sCNT}, s{sCNT}, 1')
    a(f's_sleep {cfg.gretry}')
    a(f's_cmp_lt_u32 s{sCNT}, {BIG}')
    a('s_cbranch_scc1 L_m_gather')
    a(f'v_or_b32 v{vN}, 16, v{vN}')
    a.label('L_m_gather_ok')
    ts(3)
    if cfg.ts: a(f'v_writelane_b32 v{VTS}, s{sCNT}, 30')
    top2(R_, R_ + 1, [G4 + 4 * i + h for i in range(4) for h in range(2)])
    a(f'v_mov_b32 v{R_+4}, v{R_}')
    wave_reduce('v_max_u32', [R_ + 4], [R_ + 6])
    a(f'v_cmp_eq_u32 vcc, v{R_}, v{R_+4}')
    a(f'v_cndmask_b32 v{R_+5}, v{R_}, v{R_+1}, vcc')
    wave_reduce('v_max_u32', [R_ + 5], [R_ + 6])
    gticket(R_ + 8)
    a('v_cmp_le_u32 vcc, 32, v0')
    a(f'v_cndmask_b32 v{R_}, v{R_+4}, v{R_+5}, vcc')
    a(f'v_and_b32 v{R_}, 0x7ff, v{R_}')
    a(f'v_sub_u32 v{R_}, 2047, v{R_}')
    a(f'v_and_b32 v{vT2}, 31, v0')
    a(f'v_lshlrev_b32 v{vT2}, 4, v{vT2}')
    a(f'v_lshl_add_u32 v{vT2}, v{R_}, 11, v{vT2}')
    a(f's_lshl_b32 s7, s{sKQ}, 9')
    a(f'buffer_load_dwordx4 {V(X,4)}, v{vT2}, {S(Q_)}, s7 offen')
    a(f'v_lshrrev_b32 v{vT3}, 1, v{R_}')
    a(f'v_lshlrev_b32 v{vT3}, 4, v{vT3}')
    a(f's_mov_b32 s7, {WS_STAT}')
    a(f'buffer_load_dwordx4 {V(X+4,4)}, v{vT3}, {S(WS_)}, s7 offen sc1')
    a(f'v_mov_b32 v{R_+6}, v{vN}')
    a(f'v_mov_b32 v{R_+7}, v{vN+1}')
    a('s_mov_b64 exec, 1')
    a(f'ds_write_b128 v{vZ}, {V(R_+4,4)} offset:{L_SEL}')
    if cfg.xgate: a(f'ds_add_u32 v{vZ}, v{vONE} offset:{4*C_GATE}')
    a('s_mov_b64 exec, -1')
    c0 = cfg.cearly; c1 = min(16, c0 + cfg.cfirst)
    if cfg.qtpre: qtl()
    if cfg.dnpre:
        for t in range(16, 23): wload(t)
    lds_wait(C_GATE, NG, R_ + 8, sCNT)
    for t in range(c0, c1): wload(t)
    a(f's_waitcnt vmcnt({c1 - c0 + (8 if cfg.qtpre else 0) + (7 if cfg.dnpre else 0)})')
    a(f's_mov_b32 s{sCNT}, 0')
    a.label('L_m_xstat')
    win_check([X + 6])
    a('s_cbranch_scc1 L_m_xstat_ok')
    a('s_sleep 4')
    a(f'buffer_load_dwordx4 {V(X+4,4)}, v{vT3}, {S(WS_)}, s7 offen sc1')
    a(f's_add_u32 s{sCNT}, s{sCNT}, 1')
    a('s_waitcnt vmcnt(0)')
    a(f's_cmp_lt_u32 s{sCNT}, {BIG}')
    a('s_cbranch_scc1 L_m_xstat')
    a.label('L_m_xstat_ok')
    ts(4)
    a(f'v_and_b32 v{vT2}, 1, v{R_}')
    a(f'v_cmp_eq_u32 vcc, 1, v{vT2}')
    a(f'v_cndmask_b32 v{vT2}, v{X+4}, v{X+5}, vcc')
    a(f'v_and_b32 v{R_+1}, 0xffff0000, v{vT2}')
    a(f'v_lshlrev_b32 v{R_+2}, 16, v{vT2}')
    a(f'v_rcp_f32 v{R_+2}, v{R_+2}')
    for i in range(4): unpack(X + 8 + 2 * i, X + 9 + 2 * i, X + i)
    for i in range(8): a(f'v_sub_f32 v{X+8+i}, v{X+8+i}, v{R_+1}')
    for i in range(4): round2(X + 8 + 2 * i, X + i)
    for i in range(8): a(f'v_mul_f32 v{X+8+i}, v{X+8+i}, v{R_+2}')
    for i in range(8): a(f'v_cvt_pk_bf16_f32 v{X+8+i}, v{X+8+i}, v{X+8+i}')
    a(f'v_lshlrev_b32 v{vT2}, 5, v0')
    a(f'ds_write_b128 v{vT2}, {V(X+8,4)} offset:{L_XD}')
    a(f'ds_write_b128 v{vT2}, {V(X+12,4)} offset:{L_XD+16}')
    lds_inc(C_XRDY)
    for t in range(c1, 16): wload(t)
    a.label('L_m_join')
    later = []
    for r in range(8):
        so, io = rowoff[r]
        later.append(lambda r=r, so=so, io=io: a(f'buffer_load_dwordx2 {V(QT+2*r,2)}, v{vC}, {S(Q_)}, {so} offen{off(io)}{NT}'))
    for i in range(4):
        later.append(lambda i=i: a(f'buffer_load_dwordx4 {V(ST+4*i,4)}, v{vSA}, {S(WS_)}, s15 offen{off(16*i)} sc1'))
    dn = [] if cfg.dnpre else [lambda t=t: wload(t) for t in range(16, 23)]
    dn.append(lambda: a(f'buffer_load_dword v250, v{vDPa}, {S(WS_)}, s12 offen sc1'))
    later = (dn + later) if cfg.order else (later + dn)
    if cfg.qtpre: later = later[8:]
    for _ in range(cfg.lat0): later.pop(0)()
    lds_wait(C_XRDY, 1, vT3, sCNT)
    if cfg.mprio: a(f's_setprio {cfg.mprio}')
    a(f'ds_read_b128 {V(R_,4)}, v{vZ} offset:{L_SEL}')
    a(f'v_lshrrev_b32 v{vT2}, 3, v{vM}')
    a(f'v_lshlrev_b32 v{vT2}, 10, v{vT2}')
    a(f'v_lshl_add_u32 v{vT2}, v{vG}, 6, v{vT2}')
    a('s_lshl_b32 s7, s3, 8')
    a(f'v_add_u32 v{vT2}, s7, v{vT2}')
    for i in range(4):
        a(f'ds_read_b128 {V(XD+4*i,4)}, v{vT2} offset:{L_XD+16*i}')
    a('s_waitcnt lgkmcnt(0)')
    a(f'v_mov_b32 v{vN}, v{R_+2}')
    a(f'v_mov_b32 v{vN+1}, v{R_+3}')
    a(f'v_readfirstlane_b32 s{sI0}, v{R_}')
    a(f'v_readfirstlane_b32 s{sI1}, v{R_+1}')
    a(f'v_add_co_u32 v{vN2}, vcc, 0x4000000, v{vN}')
    a(f'v_addc_co_u32 v{vN2+1}, vcc, 0, v{vN+1}, vcc')
    for h in range(2):
        a(f'v_mov_b32 v{GT+4*h+2}, v{vN}')
        a(f'v_mov_b32 v{GT+4*h+3}, v{vN+1}')
    a(f's_lshl_b32 s7, s{sMAT}, 2')
    a(f's_add_u32 s7, s7, s{sKQ}')
    a('s_mul_i32 s7, s7, 3584')
    a(f's_lshl_b32 s8, s{sFB}, 7')
    a('s_add_u32 s7, s7, s8')
    a(f's_lshl_b32 s7, s7, {3 if cfg.prepack else 4}')
    a(f's_add_u32 s7, s7, {WS_PRE}')
    a(f'v_lshlrev_b32 v{vT2}, 3, v0')
    def onehot_mfma(wbase, xd, n, later=None):
        issued = cfg.lat0
        for t in range(n):
            b = BFm + 4 * (t & 1)
            for jd in range(4):
                a(f'v_and_b32 v{b+jd}, v{MK+jd}, v{xd+t}')
            if later is not None:
                a(f's_waitcnt vmcnt({n - 1 - t + issued})')
                if t == n - 1: ts(5)
            cin = '0' if t == 0 else V(ACC, 4)
            a(f'v_mfma_f32_16x16x32_bf16 {V(ACC,4)}, {V(wbase+4*t,4)}, {V(b,4)}, {cin}')
            if later and t < n - 1 and t >= cfg.lstart:
                later.pop(0)(); issued += 1
    onehot_mfma(GW, XD, 16, later)
    a(f's_cmp_ge_u32 s{sG}, 224')
    a('s_cbranch_scc1 L_m_noG')
    ts(13)
    for jj in range(4):
        a(f'ds_write_b32 v{vRGa}, v{ACC+jj} offset:{L_RG+64*jj}')
    def red4(base):
        for h in range(2):
            for sl in range(4):
                a(f'ds_read_b64 {V(X+8*h+2*sl,2)}, v{vT2} offset:{base+512*h+1024*sl}')
        a('s_waitcnt lgkmcnt(0)')
        for h in range(2):
            add2( X + 8 * h, X + 8 * h, X + 8 * h + 2)
            add2( X + 8 * h + 4, X + 8 * h + 4, X + 8 * h + 6)
        for h in range(2):
            add2( GT + 4 * h, X + 8 * h, X + 8 * h + 4)
    assert cfg.prepack
    a('s_mov_b64 exec, 1')
    a(f'ds_add_rtn_u32 v{R_+2}, v{vZ}, v{vONE} offset:{4*C_G}')
    a('s_mov_b64 exec, -1')
    for sl in range(4):
        a(f'ds_read_b128 {V(X+4*sl,4)}, v{vQ} offset:{L_RG+1024*sl}')
    a('s_waitcnt lgkmcnt(0)')
    ts(14)
    a(f'v_readfirstlane_b32 s{sLAST}, v{R_+2}')
    for h in (0, 2):
        add2( X + h, X + h, X + 4 + h)
        add2( X + 8 + h, X + 8 + h, X + 12 + h)
    a(f's_cmp_eq_u32 s{sLAST}, 3')
    a('s_cbranch_scc0 L_m_gwait')
    for h in (0, 2):
        add2( X + h, X + h, X + 8 + h)
    a(f'v_cvt_pk_bf16_f32 v{GT}, v{X}, v{X+1}')
    a(f'v_cvt_pk_bf16_f32 v{GT+1}, v{X+2}, v{X+3}')
    a(f'buffer_store_dwordx4 {V(GT,4)}, v{vQ}, {S(WS_)}, s7 offen sc1')
    lds_inc(C_G)
    a.label('L_m_gwait')
    if cfg.lowmid: a('s_setprio 0')
    ts(6)
    if cfg.dly == 5:
        a('s_memrealtime s[100:101]')
        a('s_waitcnt lgkmcnt(0)')
        a('s_add_u32 s99, s100, 150')
        a.label('L_dly')
        a('s_sleep 1')
        a('s_memrealtime s[100:101]')
        a('s_waitcnt lgkmcnt(0)')
        a('s_sub_u32 s100, s100, s99')
        a('s_cmp_lt_i32 s100, 0')
        a('s_cbranch_scc1 L_dly')
    first, rest = later[:cfg.lpre], later[cfg.lpre:]
    for f in first: f()
    if cfg.gpub: lds_wait(C_G, 5, vT3, sCNT)
    a('s_branch L_m_rest')
    a.label('L_m_noG')
    if cfg.lowmid: a('s_setprio 0')
    for f in first: f()
    a.label('L_m_rest')
    later = rest
    if cfg.lsleep: a(f's_sleep {cfg.lsleep}')
    for f in later: f()
    if cfg.pearly:
        if cfg.pearly > 1: a(f's_sleep {cfg.pearly}')
        for kq in range(4):
            a(f'buffer_load_dwordx4 {V(X+4*kq,4)}, v{vPRa}, {S(WS_)}, s{80+kq} offen sc1')
    a('s_waitcnt vmcnt(%d)' % ((0 if cfg.order else (1 if cfg.dnpre else 8)) + (4 if cfg.pearly else 0)))
    a(f's_mov_b32 s{sCNT}, 0')
    a.label('L_m_stat')
    win_check([ST + 4 * i + 2 for i in range(4)])
    a('s_cbranch_scc1 L_m_stat_ok')
    a('s_sleep 4')
    for i in range(4):
        a(f'buffer_load_dwordx4 {V(ST+4*i,4)}, v{vSA}, {S(WS_)}, s15 offen{off(16*i)} sc1')
    a(f's_add_u32 s{sCNT}, s{sCNT}, 1')
    a('s_waitcnt vmcnt(0)')
    a(f's_cmp_lt_u32 s{sCNT}, {BIG}')
    a('s_cbranch_scc1 L_m_stat')
    a.label('L_m_stat_ok')
    a(f's_mul_i32 s10, s3, {XTW}')
    a(f'v_add_u32 v{vT3}, s10, v{vQ}')
    for i in range(4):
        a(f'ds_write_b128 v{vT3}, {V(QT+4*i,4)} offset:{L_XT+1024*i}')
    a(f'v_add_u32 v{vT3}, s10, v{vT2}')
    for i in range(4):
        a(f'ds_write_b64 v{vT3}, {V(ST+4*i,2)} offset:{L_XT+4096+512*i}')
    a('s_lshl_b32 s10, s3, 2')
    a(f'v_mov_b32 v{vT3}, s10')
    lds_inc(C_XT, vT3)
    ts(7)
    lds_wait(C_MODE, 1, vT3, sCNT)
    a(f'v_readfirstlane_b32 s14, v{vT3}')
    if not cfg.pearly: a(f's_waitcnt vmcnt({cfg.prewait})')
    if cfg.pre0: a(f's_sleep {cfg.pre0}')
    a(f's_mov_b32 s{sCNT}, 0')
    if cfg.dly == 2:
        a('s_memrealtime s[100:101]')
        a('s_waitcnt lgkmcnt(0)')
        a('s_add_u32 s99, s100, 150')
        a.label('L_dly')
        a('s_sleep 1')
        a('s_memrealtime s[100:101]')
        a('s_waitcnt lgkmcnt(0)')
        a('s_sub_u32 s100, s100, s99')
        a('s_cmp_lt_i32 s100, 0')
        a('s_cbranch_scc1 L_dly')
    PM = [(92, 93), (94, 95), (96, 97), (98, 99)]
    for lo, hi in PM: a(f's_mov_b64 s[{lo}:{hi}], -1')
    if cfg.pearly: a('s_branch L_m_pre1')
    a.label('L_m_pre')
    for kq in range(4):
        a(f's_mov_b64 exec, s[{PM[kq][0]}:{PM[kq][1]}]')
        a(f's_cbranch_execz L_m_pre_s{kq}')
        a(f'buffer_load_dwordx4 {V(X+4*kq,4)}, v{vPRa}, {S(WS_)}, s{80+kq} offen sc1')
        a.label(f'L_m_pre_s{kq}')
    a('s_mov_b64 exec, -1')
    a.label('L_m_pre1')
    a('s_waitcnt vmcnt(0)')
    for kq in range(4):
        a(f'v_cmp_ne_u64 s[{PM[kq][0]}:{PM[kq][1]}], {V(X+4*kq+2,2)}, {V(vN,2)}')
    a('s_or_b64 s[10:11], s[92:93], s[94:95]')
    a('s_or_b64 s[10:11], s[10:11], s[96:97]')
    a('s_or_b64 s[10:11], s[10:11], s[98:99]')
    a('s_cbranch_scc0 L_m_pre_ok')
    a(f's_add_u32 s{sCNT}, s{sCNT}, 1')
    a(f's_sleep {cfg.presleep}')
    a(f's_cmp_lt_u32 s{sCNT}, {BIG}')
    a('s_cbranch_scc1 L_m_pre')
    a.label('L_m_pre_ok')
    if cfg.lowmid: a(f's_setprio {cfg.mprio}')
    ts(8)
    if cfg.ts: a(f'v_writelane_b32 v{VTS}, s{sCNT}, 31')
    if cfg.prepack:
        a('v_cmp_eq_u32 vcc, 1, v246')
        for kq in range(4):
            a(f'v_cndmask_b32 v{X+4*kq+2}, v{X+4*kq}, v{X+4*kq+1}, vcc')
        for kq in range(4):
            unpack(X + 4 * kq, X + 4 * kq + 1, X + 4 * kq + 2)
    add2( X, X, X + 4)
    add2( X + 8, X + 8, X + 12)
    add2( X, X, X + 8)
    round2(X, X + 4)
    for tok in range(2): a(f'v_mul_f32 v{X+4+tok}, 0xbfb8aa3b, v{X+tok}')
    for tok in range(2): a(f'v_exp_f32 v{X+4+tok}, v{X+4+tok}')
    for tok in range(2): a(f'v_add_f32 v{X+4+tok}, 1.0, v{X+4+tok}')
    for tok in range(2): a(f'v_rcp_f32 v{X+4+tok}, v{X+4+tok}')
    for tok in range(2): a(f'v_mul_f32 v{X+4+tok}, v{X+4+tok}, v{X+tok}')
    round2(X + 4, X + 6)
    for tok in range(2):
        a(f'v_mul_f32_dpp v{X+8+tok}, v{X+tok}, v{X+4+tok} quad_perm:[1,0,3,2] row_mask:0xf bank_mask:0xf')
    a('s_mov_b32 s8, 0x55555555')
    a('s_mov_b32 s9, 0x55555555')
    for tok in range(2):
        a(f'v_cvt_pk_bf16_f32 v{X+8+tok}, v{X+8+tok}, v{X+8+tok}')
    a('s_mov_b64 exec, s[8:9]')
    a(f'ds_write_b32 v{vHw}, v{X+8} offset:{L_H}')
    a(f'ds_write_b32 v{vHw}, v{X+9} offset:{L_H+128}')
    a('s_mov_b64 exec, -1')
    a(f'ds_read_b128 {V(XD,4)}, v{vHr} offset:{L_H}')
    a(f'ds_read_b128 {V(XD+4,4)}, v{vHr} offset:{L_H+16}')
    a('s_waitcnt lgkmcnt(0)')
    onehot_mfma(DW, XD, 7)
    for jj in range(4):
        a(f'ds_write_b32 v{vRDa}, v{ACC+jj} offset:{L_RD+32*jj}')
    lds_ticket(C_DN, R_ + 2, sLAST)
    a(f's_cmp_eq_u32 s{sLAST}, 3')
    a('s_cbranch_scc0 L_m_noDpub')
    red4(L_RD)
    a('s_cmp_eq_u32 s14, 2')
    a('s_cbranch_scc0 L_m_dpslow')
    for tok in range(2):
        a(f'buffer_store_dwordx4 {V(GT+4*tok,4)}, v{vQ}, {S(WS_)}, s{12+tok} offen')
    a('s_branch L_m_noDpub')
    a.label('L_m_dpslow')
    for tok in range(2):
        a(f'buffer_store_dwordx4 {V(GT+4*tok,4)}, v{vQ}, {S(WS_)}, s{12+tok} offen sc1')
    a.label('L_m_noDpub')
    ts(9)
    DM = [(s, s + 1) for s in (44, 46, 48, 50, 52, 54, 56, 58)]
    for tok in range(2):
        sk = sI0 + tok
        a(f's_and_b32 s15, s{sk}, 0x7ff')
        a('s_sub_u32 s15, 2047, s15')
        a('s_lshr_b32 s7, s15, 6')
        a('s_cmp_eq_u32 s7, s5')
        a(f's_cbranch_scc0 L_m_upd_skip{tok}')
        a('s_lshl_b32 s7, s4, 16')
        a(f's_add_u32 s7, s7, {WS_DP + 32768*tok}')
        a('s_lshl_b32 s8, s3, 8')
        a('s_add_u32 s7, s7, s8')
        a('s_add_u32 s8, s7, 4096')
        a(f'v_lshlrev_b32 v{vT3}, 13, v{vG}')
        a(f'v_lshl_add_u32 v{vT3}, v{vM}, 4, v{vT3}')
        for lo, hi in DM: a(f's_mov_b64 s[{lo}:{hi}], -1')
        a(f's_and_b32 s9, s{sk}, 0xffff0000')
        a('s_ashr_i32 s10, s9, 31')
        a('s_not_b32 s10, s10')
        a('s_or_b32 s10, s10, 0x80000000')
        a('s_xor_b32 s9, s9, s10')
        a('s_and_b32 s9, s9, 0xffff0000')
        a(f'v_mov_b32 v{R_}, s9')
        a(f'v_mul_f32 v{R_}, 0xbfb8aa3b, v{R_}')
        a(f'v_exp_f32 v{R_}, v{R_}')
        a(f'v_add_f32 v{R_}, 1.0, v{R_}')
        a(f'v_rcp_f32 v{R_}, v{R_}')
        a(f'v_cvt_pk_bf16_f32 v{R_}, v{R_}, v{R_}')
        a(f'v_and_b32 v{R_}, 0xffff0000, v{R_}')
        a('s_bfe_u32 s9, s15, 0x10005')
        a('s_lshl_b32 s9, s9, 1')
        a('s_lshr_b32 s10, s3, 1')
        a('s_add_u32 s9, s9, s10')
        a('s_lshl_b32 s10, s9, 2')
        a(f'v_mov_b32 v{R_+1}, s10')
        a(f's_mul_i32 s9, s9, {TABW}')
        a('s_and_b32 s10, s15, 31')
        a('s_lshl_b32 s10, s10, 8')
        a('s_add_u32 s9, s9, s10')
        a('s_and_b32 s10, s3, 1')
        a('s_lshl_b32 s10, s10, 7')
        a('s_add_u32 s9, s9, s10')
        a(f's_add_u32 s9, s9, {L_TAB}')
        a(f'v_lshlrev_b32 v{R_+4}, 3, v{vM}')
        a(f'v_add_u32 v{R_+4}, s9, v{R_+4}')
        a('s_lshl_b32 s15, s15, 11')
        a('s_lshl_b32 s9, s4, 8')
        a('s_add_u32 s15, s15, s9')
        a('s_lshl_b32 s9, s3, 6')
        a('s_add_u32 s15, s15, s9')
        a(f'v_lshlrev_b32 v{R_+5}, 2, v{vM}')
        a(f's_mov_b32 s{sCNT}, 0')
        a.label(f'L_m_dp{tok}')
        for i in range(8):
            a(f's_mov_b64 exec, s[{DM[i][0]}:{DM[i][1]}]')
            a(f's_cbranch_execz L_m_dp{tok}_s{i}')
            a(f'buffer_load_dwordx4 {V(X+4*i,4)}, v{vT3}, {S(WS_)}, s{7+(i>>2)} offen{off(1024*(i&3))} sc1')
            a.label(f'L_m_dp{tok}_s{i}')
        a('s_mov_b64 exec, -1')
        a('s_waitcnt vmcnt(0)')
        for i in range(8):
            a(f'v_cmp_ne_u64 s[{DM[i][0]}:{DM[i][1]}], {V(X+4*i+2,2)}, {V(vN,2)}')
        a(f's_or_b64 s[10:11], s[{DM[0][0]}:{DM[0][1]}], s[{DM[1][0]}:{DM[1][1]}]')
        for i in range(2, 8):
            a(f's_or_b64 s[10:11], s[10:11], s[{DM[i][0]}:{DM[i][1]}]')
        a(f's_cbranch_scc0 L_m_dp_ok{tok}')
        if cfg.dpsleep: a(f's_sleep {cfg.dpsleep}')
        a(f's_add_u32 s{sCNT}, s{sCNT}, 1')
        a(f's_cmp_lt_u32 s{sCNT}, {BIG*4}')
        a(f's_cbranch_scc1 L_m_dp{tok}')
        a.label(f'L_m_dp_ok{tok}')
        ts(12)
        for i in range(0, 8, 2):
            add2( X + 4 * i, X + 4 * i, X + 4 * i + 4)
        add2( X, X, X + 8)
        add2( X + 16, X + 16, X + 24)
        add2( X, X, X + 16)
        cross_rows('v_add_f32', [X, X + 1], [X + 4, X + 5])
        round2(X, X + 4)
        a(f'v_mul_f32 v{X}, v{X}, v{R_}')
        a(f'v_mul_f32 v{X+1}, v{X+1}, v{R_}')
        round2(X, X + 4)
        lds_wait(C_ST, 1, R_ + 2, sCNT, vaddr=R_ + 1)
        a(f'ds_read_b64 {V(X+4,2)}, v{R_+4}')
        a('s_waitcnt lgkmcnt(0)')
        add2( X, X, X + 4)
        a(f'v_cvt_pk_bf16_f32 v{X}, v{X}, v{X+1}')
        a('s_mov_b64 exec, 0xffff')
        a(f'buffer_store_dword v{X}, v{R_+5}, {S(OUTM_)}, s15 offen')
        a('s_mov_b64 exec, -1')
        a.label(f'L_m_upd_skip{tok}')
    ts(10)
    ts_store(WS_, 4)
    a.label('L_end')
    a('s_endpgm')

    a.hist = []
    partM = a.lines; a.lines = []
    a.label('L_C')
    K_, V_, SH_, HK_, DD_, OUT_, WS_, DBG_, SCR_ = range(44, 80, 4)
    sXCC, sCNT, sMODE, sCH, sCL, sHC2, sFET = 92, 93, 94, 95, 96, 97, 98
    vS, vAa, vBa, vY, vF, vU, vT2, vT3 = 3, 4, 5, 6, 7, 8, 11, 12
    vN = 14
    KR, VR, SHR, HS = 16, 38, 56, 64
    vFL = 52
    vQ4 = 48
    vD = 88; vPA = 89; vFA = 90; vTa = 91; vP = 92
    W_ = 96; KF = 112; KVP = 156; TMP = 172
    PT = 244
    srd(a, K_, P_K, 0x400000)
    if cfg.qfirst: a('s_barrier')
    a(f'buffer_load_dwordx2 {V(KR,2)}, v11, {S(K_)}, 0 offen{NT}')
    a(f'buffer_load_dwordx2 {V(KR+2,2)}, v11, {S(K_)}, 0 offen offset:2048{NT}')
    a(f'buffer_load_dwordx2 {V(KR+4,2)}, v12, {S(K_)}, 0 offen{NT}')
    for r in range(8):
        so, io = rowoff[r]
        a(f'buffer_load_dwordx2 {V(KR+6+2*r,2)}, v{vC}, {S(K_)}, {so} offen{off(io)}{NT}')
    srd(a, SH_, P_SH, 8192)
    a('s_lshl_b32 s7, s4, 10')
    a(f's_lshl_b32 s8, s{sHC}, 9')
    a('s_add_u32 s7, s7, s8')
    a(f'v_lshlrev_b32 v{vT2}, 5, v{vT0}')
    a(f'buffer_load_dwordx4 {V(SHR,4)}, v{vT2}, {S(SH_)}, s7 offen')
    a(f'buffer_load_dwordx4 {V(SHR+4,4)}, v{vT2}, {S(SH_)}, s7 offen offset:16')
    srd(a, V_, P_V, 0x400000)
    for r in range(8):
        so, io = rowoff[r]
        a(f'buffer_load_dwordx2 {V(VR+2*r,2)}, v{vC}, {S(V_)}, {so} offen{off(io)}{NT}')
    srd(a, OUT_, P_OUT, 0x400000)
    a(f'v_lshlrev_b32 v{vTa}, 4, v0')
    a(f'v_lshlrev_b32 v{vS}, 12, v{vT0}')
    a(f'v_lshl_add_u32 v{vS}, v{vT1}, 4, v{vS}')
    a(f'v_add_u32 v{vS}, s6, v{vS}')
    soff = [0, 64, 2048, 2112]
    a(f'v_lshl_add_u32 v{vT2}, v{vT1}, 4, v{vS}')
    if not cfg.pt: a(f'v_mov_b32 v{vT2}, 0x7ff00000')
    a(f'buffer_load_dword v{PT}, v{vT2}, {S(OUT_)}, 0 offen{cfg.polpt}')
    a(f'buffer_load_dword v{PT+1}, v{vT2}, {S(OUT_)}, 0 offen offset:2048{cfg.polpt}')
    srd(a, HK_, P_HK, 0x400000)
    srd(a, DD_, P_D, 2048)
    a(f's_lshl_b32 s{sCH}, s4, 7')
    a('s_lshl_b32 s7, s5, 2')
    a(f's_add_u32 s{sCH}, s{sCH}, s7')
    a(f's_add_u32 s{sCH}, s{sCH}, s3')
    def hs_loads():
        a(f's_lshl_b32 s12, s{sCH}, 12')
        a(f's_lshl_b32 s13, s{sCH}, 1')
        a(f'buffer_load_ushort v{vD}, v{vZ}, {S(DD_)}, s13 offen')
        for it in range(4):
            a(f'buffer_load_dwordx4 {V(HS+6*it,4)}, v{vTa}, {S(HK_)}, s12 offen{off(1024*it)}{cfg.polh}')
            a(f'buffer_load_dwordx2 {V(HS+6*it+4,2)}, v{vTa}, {S(HK_)}, s12 offen offset:{1024*it+16}{cfg.polh}')
    nh = 0
    ts(0)
    srd(a, WS_, P_WS, 0x10000000)
    srd(a, DBG_, P_DBG, 256)
    srd(a, SCR_, P_OUT, 0x400000)
    a(f's_mov_b32 s{s1m}, 0x100000')
    a(f's_mov_b32 s{s2m}, 0x200000')
    a(f's_mov_b32 s{s3m}, 0x300000')
    a(f's_getreg_b32 s{sXCC}, hwreg(HW_REG_XCC_ID, 0, 4)')
    a(f's_lshr_b32 s{sHC2}, s5, 4')
    a('s_and_b32 s7, s5, 15')
    a('s_lshl_b32 s7, s7, 2')
    a(f's_add_u32 s{sCL}, s7, s3')
    a(f's_lshr_b32 s9, s{sCL}, 1')
    a('s_lshl_b32 s9, s9, 11')
    a('s_lshl_b32 s7, s4, 8')
    a('s_add_u32 s9, s9, s7')
    a(f's_lshl_b32 s7, s{sHC2}, 7')
    a('s_add_u32 s9, s9, s7')
    a(f's_and_b32 s7, s{sCL}, 1')
    a('s_lshl_b32 s7, s7, 6')
    a('s_add_u32 s9, s9, s7')
    a(f'v_lshrrev_b32 v{vF}, 2, v0')
    a(f'v_lshlrev_b32 v{vF}, 16, v{vF}')
    a(f'v_and_b32 v{vT2}, 3, v0')
    a(f'v_lshl_add_u32 v{vF}, v{vT2}, 4, v{vF}')
    a(f'v_add_u32 v{vF}, s9, v{vF}')
    a(f'v_and_b32 v{vT2}, 1, v{vT1}')
    a(f'v_lshlrev_b32 v{vT2}, 3, v{vT2}')
    a(f'v_lshrrev_b32 v{vT3}, 1, v{vT0}')
    a(f'v_add_u32 v{vT2}, v{vT2}, v{vT3}')
    a(f'v_lshlrev_b32 v{vY}, 16, v{vT2}')
    a(f'v_and_b32 v{vT2}, 1, v{vT0}')
    a(f'v_lshlrev_b32 v{vT2}, 1, v{vT2}')
    a(f'v_lshrrev_b32 v{vT3}, 1, v{vT1}')
    a(f'v_add_u32 v{vT2}, v{vT2}, v{vT3}')
    a(f'v_lshl_add_u32 v{vY}, v{vT2}, 4, v{vY}')
    a(f'v_add_u32 v{vY}, s9, v{vY}')
    a(f's_mul_i32 s10, s3, {TABW}')
    a(f's_add_u32 s10, s10, {L_TAB}')
    a(f's_mul_i32 s11, s3, {USTR}')
    a(f's_add_u32 s11, s11, {L_U}')
    a('s_add_u32 s7, s11, 1008')
    a(f'v_sub_u32 v{vU}, s7, v{vTa}')
    a(f'v_lshlrev_b32 v{vT2}, 5, v{vT0}')
    a('s_add_u32 s7, s11, 480')
    a(f'v_sub_u32 v{vBa}, s7, v{vT2}')
    a(f'v_lshl_add_u32 v{vBa}, v{vT1}, 4, v{vBa}')
    a(f'v_add_u32 v{vT2}, 1, v{vT0}')
    a(f'v_and_b32 v{vT3}, 3, v{vT2}')
    a(f'v_mul_u32_u24 v{vAa}, {TSTR}, v{vT3}')
    a(f'v_and_b32 v{vT2}, 0x1c, v{vT2}')
    a(f'v_lshl_add_u32 v{vAa}, v{vT2}, 1, v{vAa}')
    a(f'v_lshl_add_u32 v{vAa}, v{vT1}, 4, v{vAa}')
    a(f'v_add_u32 v{vAa}, s10, v{vAa}')
    a('s_lshl_b32 s7, s4, 1')
    a(f's_add_u32 s8, s7, s{sHC}')
    a('s_lshl_b32 s8, s8, 6')
    a('s_lshl_b32 s14, s5, 1')
    a('s_add_u32 s8, s8, s14')
    a(f's_add_u32 s8, s8, s{sHR}')
    a('s_lshl_b32 s8, s8, 4')
    a(f'v_mov_b32 v{vFA}, s8')
    a(f's_add_u32 s8, s7, s{sHC2}')
    a('s_lshl_b32 s8, s8, 10')
    a(f'v_add_u32 v{vPA}, s8, v{vTa}')
    for i in range(4): a(f'v_mov_b32 v{TMP+i}, 0')
    a(f'v_lshlrev_b32 v{vT2}, 3, v0')
    a(f'v_add_u32 v{vT2}, s11, v{vT2}')
    a(f'ds_write_b64 v{vT2}, {V(TMP,2)} offset:4096')
    a(f'v_bfe_u32 v{vT2}, v0, 1, 2')
    a(f'v_mul_u32_u24 v{vT2}, {TSTR}, v{vT2}')
    a(f'v_and_b32 v{vT3}, 1, v0')
    a(f'v_lshl_add_u32 v{vT2}, v{vT3}, 4, v{vT2}')
    a(f'v_add_u32 v{vT2}, s10, v{vT2}')
    a(f'ds_write_b128 v{vT2}, {V(TMP,4)}')
    vTw = 95
    a(f'v_add_u32 v{vTw}, s10, v{vTa}')
    a(f's_mov_b32 s7, {WS_FA}')
    a(f's_mov_b32 s8, {WS_FB}')
    a(f's_mov_b32 s{sMODE}, 1')
    a(f's_mov_b32 s{sFET}, 0')
    if cfg.prio: a(f's_setprio {cfg.prio}')
    a(f's_waitcnt vmcnt(10)')
    if cfg.hsmode == 3:
        hs_loads(); nh = 9
    a(f'buffer_load_dwordx2 {V(vN,2)}, v{vZ}, {S(DBG_)}, 0 offen sc1')
    if cfg.hsmode == 3 and cfg.wearly: lds_inc(C_TRIG)
    ts(1)
    for ch in range(4):
        unpack(W_ + 0 * 4 + ch, W_ + 1 * 4 + ch, SHR + 2 * ch)
        unpack(W_ + 2 * 4 + ch, W_ + 3 * 4 + ch, SHR + 2 * ch + 1)
    for r in range(11):
        unpack(KF + 4 * r, KF + 4 * r + 1, KR + 2 * r)
        unpack(KF + 4 * r + 2, KF + 4 * r + 3, KR + 2 * r + 1)
    KS = TMP; RT = 204
    for r in range(8):
        for h in (0, 2):
            pk('v_pk_mul_f32', KS + 4 * r + h, KF + 4 * r + h, W_ + 12 + h)
        if cfg.exact_ks == 2:
            for h in (0, 2): round2(KS + 4 * r + h, RT + h // 2)
        for t in (2, 1, 0):
            for h in (0, 2):
                if cfg.exact_ks == 2:
                    pk('v_pk_mul_f32', RT + 2 + h, KF + 4 * (r + 3 - t) + h, W_ + 4 * t + h)
                    round2(RT + 2 + h, RT + h // 2)
                    pk('v_pk_add_f32', KS + 4 * r + h, KS + 4 * r + h, RT + 2 + h)
                    round2(KS + 4 * r + h, RT + h // 2)
                else:
                    pk('v_pk_fma_f32', KS + 4 * r + h, KF + 4 * (r + 3 - t) + h, W_ + 4 * t + h, KS + 4 * r + h)
        if cfg.exact_ks == 1:
            for h in (0, 2): round2(KS + 4 * r + h, RT + h // 2)
    a(f's_waitcnt vmcnt({3+nh})')
    ts(2)
    VF = KF
    for r in range(8):
        unpack(VF + 4 * r, VF + 4 * r + 1, VR + 2 * r)
        unpack(VF + 4 * r + 2, VF + 4 * r + 3, VR + 2 * r + 1)
    for r in range(8):
        for h in (0, 2):
            pk('v_pk_mul_f32', KS + 4 * r + h, KS + 4 * r + h, VF + 4 * r + h)
    for ch in range(4):
        for rp in range(4):
            a(f'v_cvt_pk_bf16_f32 v{KVP+4*ch+3-rp}, v{KS+4*(2*rp+1)+ch}, v{KS+4*(2*rp)+ch}')
        a(f'buffer_store_dwordx4 {V(KVP+4*ch,4)}, v{vS}, {S(OUT_)}, 0 offen{off(soff[ch])}')
    ts(3)
    ACCB = 96; AF = 128; BF = 176; BALT = 208; AD = 216; FET = 220
    TB = 96
    mo = ['0', f's{s1m}', f's{s2m}', f's{s3m}']
    def table(it):
        d = HS + 6 * it
        t1, t2, t3 = TB, TB + 4, TB + 8
        if it & 1: t1, t2, t3 = TB + 12, TB + 16, TB + 20
        a(f'ds_write_b128 v{vTw}, {V(d,4)} offset:{32+1024*it}')
        for jj in range(4): a(f'v_alignbyte_b32 v{t1+jj}, v{d+jj+1}, v{d+jj}, 2')
        a(f'ds_write_b128 v{vTw}, {V(t1,4)} offset:{32+1024*it+TSTR}')
        for jj in range(4): a(f'v_mov_b32 v{t2+jj}, v{d+jj+1}')
        a(f'ds_write_b128 v{vTw}, {V(t2,4)} offset:{32+1024*it+2*TSTR}')
        for jj in range(4): a(f'v_alignbyte_b32 v{t3+jj}, v{d+jj+2}, v{d+jj+1}, 2')
        a(f'ds_write_b128 v{vTw}, {V(t3,4)} offset:{32+1024*it+3*TSTR}')
        if it == 0:
            a(f'v_lshlrev_b32 v{vT3}, 16, v{d}')
            a('s_mov_b64 exec, 1')
            a(f'ds_write_b32 v{vTw}, v{vT3} offset:{TSTR+28}')
            a(f'ds_write_b32 v{vTw}, v{d} offset:{2*TSTR+28}')
            a(f'ds_write_b32 v{vTw}, v{vT3} offset:{3*TSTR+24}')
            a(f'ds_write_b32 v{vTw}, v{t1} offset:{3*TSTR+28}')
            a('s_mov_b64 exec, -1')
    def adfrag():
        a(f'v_lshlrev_b32 v{vT2}, 3, v{vT1}')
        a(f'v_add_u32 v{vT2}, v{vT2}, v{vT0}')
        a(f'v_sub_u32 v{vT2}, 15, v{vT2}')
        a(f'v_and_b32 v{vT3}, 1, v{vT2}')
        a(f'v_lshlrev_b32 v{vT3}, 4, v{vT3}')
        a(f'v_lshlrev_b32 v{vT3}, v{vT3}, v{vD}')
        a(f'v_ashrrev_i32 v{vT2}, 1, v{vT2}')
        for jd in range(4):
            a(f'v_cmp_eq_u32 vcc, {jd}, v{vT2}')
            a(f'v_cndmask_b32 v{AD+jd}, 0, v{vT3}, vcc')
    def fetch():
        for it in range(4):
            a(f'buffer_load_dwordx4 {V(FET+4*it,4)}, v{vF}, {S(SCR_)}, {mo[it]} offen sc1')
        lds_inc(C_GATE)
    def poll_issue():
        a(f'buffer_load_dwordx2 {V(vP,2)}, v{vPA}, {S(WS_)}, s7 offen sc1')
    def poll_step(lbl):
        if cfg.force_slow: return
        a(f's_cmp_eq_u32 s{sFET}, 1')
        a(f's_cbranch_scc1 {lbl}')
        a('s_waitcnt vmcnt(0)')
        a(f'v_cmp_eq_u64 vcc, {V(vP,2)}, {V(vFL,2)}')
        a('s_cmp_eq_u64 vcc, exec')
        a(f's_cbranch_scc1 {lbl}_f')
        poll_issue()
        a(f's_branch {lbl}')
        a.label(f'{lbl}_f')
        fetch()
        a(f's_mov_b32 s{sFET}, 1')
        a.label(lbl)
    if cfg.hsmode == 3:
        a('s_waitcnt vmcnt(11)')
        adfrag()
        table(0)
        a('s_waitcnt vmcnt(9)')
        table(1)
    if cfg.hsmode == 2 and cfg.hse:
        lds_inc(C_PUB)
        lds_wait(C_PUB, 4, vT3, sCNT)
        hs_loads()
        lds_inc(C_TRIG)
        a('s_waitcnt vmcnt(9)')
    else:
        a('s_waitcnt vmcnt(0)')
    a('s_memrealtime s[14:15]')
    a(f's_mov_b32 s{sCNT}, 0')
    a.label('L_c_nonce')
    a(f'v_cmp_ne_u64 vcc, 0, {V(vN,2)}')
    a('s_cbranch_vccnz L_c_nonce_ok')
    a(f'buffer_load_dwordx2 {V(vN,2)}, v{vZ}, {S(DBG_)}, 0 offen sc1')
    a(f's_add_u32 s{sCNT}, s{sCNT}, 1')
    a('s_sleep 2')
    a('s_waitcnt vmcnt(0)')
    a(f's_cmp_lt_u32 s{sCNT}, {BIG}')
    a('s_cbranch_scc1 L_c_nonce')
    a.label('L_c_nonce_ok')
    a(f'v_or_b32 v{vFL}, s{sXCC}, v{vN}')
    a(f'v_mov_b32 v{vFL+1}, v{vN+1}')
    a(f'v_mov_b32 v{vFL+3}, 0')
    a('s_waitcnt lgkmcnt(0)')
    a(f'v_mov_b32 v{vFL+2}, s14')
    a('s_mov_b64 exec, 1')
    a(f'buffer_store_dwordx4 {V(vFL,4)}, v{vFA}, {S(WS_)}, s7 offen')
    a('s_mov_b64 exec, -1')
    ts(4)
    if cfg.hsmode == 3:
        table(2)
        if not cfg.force_slow: poll_issue()
        table(3)
    else:
        if not cfg.hse:
            lds_inc(C_PUB)
            lds_wait(C_PUB, 4, vT3, sCNT)
            hs_loads()
            lds_inc(C_TRIG)
        if cfg.hse and cfg.spec and not cfg.force_slow:
            def attempt():
                a('s_memrealtime s[14:15]')
                a('s_waitcnt lgkmcnt(0)')
                a(f'buffer_load_dwordx4 {V(vQ4,4)}, v{vPA}, {S(WS_)}, s7 offen sc1')
                fetch()
            ex = 0
            a('s_waitcnt vmcnt(7)')
            ts(5)
            adfrag()
            if cfg.specat == 0: attempt(); ex = 5
            table(0)
            a(f's_waitcnt vmcnt({5+ex})')
            if cfg.specat == 1: attempt(); ex = 5
            table(1)
            a(f's_waitcnt vmcnt({3+ex})')
            if cfg.specat == 2: attempt(); ex = 5
            table(2)
            a(f's_waitcnt vmcnt({ex})')
            if cfg.specat == 3: attempt(); ex = 5
            table(3)
            a('s_waitcnt vmcnt(4)')
            a(f'v_mov_b32 v{vP}, v{vQ4}')
            a(f'v_mov_b32 v{vP+1}, v{vQ4+1}')
            a(f'v_cmp_eq_u64 s[12:13], {V(vQ4,2)}, {V(vFL,2)}')
            a(f'v_sub_u32 v{vQ4+2}, s14, v{vQ4+2}')
            a(f'v_cmp_le_i32 vcc, {cfg.marg}, v{vQ4+2}')
            a('s_and_b64 vcc, vcc, s[12:13]')
            a('s_cmp_eq_u64 vcc, exec')
            a(f's_cselect_b32 s{sFET}, 1, 0')
        elif cfg.hse:
            fs = 0 if cfg.force_slow else 1
            a('s_waitcnt vmcnt(7)')
            ts(5)
            adfrag()
            table(0)
            a('s_waitcnt vmcnt(5)')
            if fs and cfg.pollat == 1: poll_issue()
            table(1)
            a(f's_waitcnt vmcnt({3 + (fs if cfg.pollat == 1 else 0)})')
            if fs and cfg.pollat == 2: poll_issue()
            table(2)
            a(f's_waitcnt vmcnt({fs})')
            poll_step('L_c_ps2')
            table(3)
        elif cfg.tord == 0:
            a('s_waitcnt vmcnt(2)')
            if not cfg.force_slow: poll_issue()
            a('s_waitcnt vmcnt(%d)' % (0 if cfg.force_slow else 1))
            ts(5)
            poll_step('L_c_ps0')
            adfrag()
            table(0)
            poll_step('L_c_ps1')
            table(1)
            poll_step('L_c_ps2')
            table(2)
            table(3)
        else:
            fs = 0 if cfg.force_slow else 1
            a('s_waitcnt vmcnt(6)')
            if fs: poll_issue()
            ts(5)
            adfrag()
            table(0)
            a(f's_waitcnt vmcnt({4+fs})')
            table(1)
            a(f's_waitcnt vmcnt({2+fs})')
            if cfg.tord == 2: poll_step('L_c_ps1')
            table(2)
            if cfg.tord == 1: a(f's_waitcnt vmcnt({fs})')
            if cfg.force_slow: a('s_waitcnt vmcnt(0)')
            poll_step('L_c_ps2')
            table(3)
    a(f's_mov_b32 s{sCNT}, 0')
    if cfg.force_slow:
        a('s_branch L_c_slow')
    a(f's_cmp_eq_u32 s{sFET}, 1')
    a('s_cbranch_scc1 L_c_fetched')
    a.label('L_c_poll')
    a('s_waitcnt vmcnt(0)')
    a(f'v_cmp_eq_u64 vcc, {V(vP,2)}, {V(vFL,2)}')
    a('s_cmp_eq_u64 vcc, exec')
    a('s_cbranch_scc1 L_c_fetch')
    poll_issue()
    a(f's_add_u32 s{sCNT}, s{sCNT}, 1')
    a(f's_cmp_lt_u32 s{sCNT}, {cfg.n1}')
    a('s_cbranch_scc1 L_c_poll')
    a('s_branch L_c_slow')
    main_lines = a.lines; a.lines = []; a.hist = []
    a.label('L_c_slow')
    a('s_waitcnt vmcnt(0)')
    srd_off(a, SCR_, P_WS, WS_KB, 0x400000)
    for ch in range(4):
        a(f'buffer_store_dwordx4 {V(KVP+4*ch,4)}, v{vS}, {S(SCR_)}, 0 offen{off(soff[ch])} sc1')
    a('s_waitcnt vmcnt(0)')
    a('s_mov_b64 exec, 1')
    a(f'buffer_store_dwordx2 {V(vFL,2)}, v{vFA}, {S(WS_)}, s8 offen sc1')
    a('s_mov_b64 exec, -1')
    a.label('L_c_poll2')
    a('s_sleep 8')
    a(f'buffer_load_dwordx2 {V(vP,2)}, v{vPA}, {S(WS_)}, s7 offen sc1')
    a(f'buffer_load_dwordx2 {V(PT+2,2)}, v{vPA}, {S(WS_)}, s8 offen sc1')
    a('s_waitcnt vmcnt(0)')
    if not cfg.force_slow:
        a(f'v_cmp_eq_u64 vcc, {V(vP,2)}, {V(vFL,2)}')
        a('s_cmp_eq_u64 vcc, exec')
        a('s_cbranch_scc1 L_c_fast_again')
    a(f'v_cmp_eq_u64 s[12:13], {V(PT+2,2)}, {V(vFL,2)}')
    a(f'v_and_b32 v{PT+2}, -16, v{PT+2}')
    a(f'v_cmp_eq_u64 vcc, {V(PT+2,2)}, {V(vN,2)}')
    a('s_cmp_eq_u64 vcc, exec')
    a('s_cbranch_scc1 L_c_slow_ok')
    a(f's_add_u32 s{sCNT}, s{sCNT}, 1')
    a(f's_cmp_lt_u32 s{sCNT}, {BIG}')
    a('s_cbranch_scc1 L_c_poll2')
    a.label('L_c_slow_ok')
    if cfg.force_slow:
        a(f's_mov_b32 s{sMODE}, 0')
    else:
        a('s_cmp_eq_u64 s[12:13], exec')
        a(f's_cselect_b32 s{sMODE}, 1, 0')
    fetch()
    a('s_waitcnt vmcnt(0)')
    a(f's_cmp_eq_u32 s{sMODE}, 1')
    a('s_cbranch_scc1 L_c_scr_out')
    srd_off(a, SCR_, P_WS, WS_YB, 0x400000)
    a('s_branch L_c_fetched')
    a.label('L_c_scr_out')
    srd(a, SCR_, P_OUT, 0x400000)
    a('s_branch L_c_fetched')
    a.label('L_c_fast_again')
    srd(a, SCR_, P_OUT, 0x400000)
    a('s_branch L_c_fetch')
    slow_lines = a.lines; a.lines = main_lines; a.hist = []
    a.label('L_c_fetch')
    fetch()
    a.label('L_c_fetched')
    a(f's_add_u32 s12, s{sMODE}, 1')
    a(f'v_mov_b32 v{vT3}, s12')
    a(f'ds_write_b32 v{vZ}, v{vT3} offset:{4*C_MODE}')
    ts(6)
    if cfg.ts:
        a(f'v_writelane_b32 v{VTS}, s{sCNT}, 30')
        a(f'v_writelane_b32 v{VTS}, s{sFET}, 31')
    def ldA(cp, extra=0):
        o = 512 * cp + extra
        a(f'ds_read_b64 {V(AF+4*cp,2)}, v{vAa} offset:{o}')
        a(f'ds_read_b64 {V(AF+4*cp+2,2)}, v{vAa} offset:{o+8}')
    def breg(e, par):
        return (BALT + 4 * e) if (e < 2 and par) else BF + 4 * e
    def ldB(e, par, extra=0):
        a(f'ds_read_b128 {V(breg(e,par),4)}, v{vBa} offset:{3584-512*e+extra}')
    for cp in range(7, -1, -1): ldA(cp)
    for it in range(4):
        a(f's_waitcnt vmcnt({3-it})')
        a(f'ds_write_b128 v{vU}, {V(FET+4*it,4)} offset:{3072-1024*it}')
    ts(7)
    if cfg.dly == 1:
        a('s_memrealtime s[100:101]')
        a('s_waitcnt lgkmcnt(0)')
        a('s_add_u32 s99, s100, 150')
        a.label('L_dly')
        a('s_sleep 1')
        a('s_memrealtime s[100:101]')
        a('s_waitcnt lgkmcnt(0)')
        a('s_sub_u32 s100, s100, s99')
        a('s_cmp_lt_i32 s100, 0')
        a('s_cbranch_scc1 L_dly')
    for e in range(8): ldB(e, 0)
    for e in range(8):
        a(f's_waitcnt lgkmcnt({7-e})')
        a(f'v_mfma_f32_16x16x32_bf16 {V(ACCB+4*e,4)}, {V(AD,4)}, {V(BF+4*e,4)}, 0')
    a(f's_mov_b32 s{sCNT}, 0')
    def mf(cp, e, par):
        nt = cp + e
        a(f'v_mfma_f32_16x16x32_bf16 {V(ACCB+4*nt,4)}, {V(AF+4*cp,4)}, {V(breg(e,par),4)}, {V(ACCB+4*nt,4)}')
    if cfg.noconv:
        a('s_sleep 110'); a('s_branch L_conv_end')
    def residue_old(par, nx):
        issued = 0
        for cp in range(7, -1, -1):
            for e in range(0, 8 - cp):
                if e == 7 - cp and e >= 2 and cp >= 1:
                    a(f's_waitcnt lgkmcnt({min((7 - e) + 2 + issued, 15)})')
                if cp == 7 and e == 0: a('s_waitcnt lgkmcnt(8)')
                if cp == 0 and e == 0: a(f's_waitcnt lgkmcnt({min(issued,15)})')
                mf(cp, e, par)
                if cp == 0 and e >= 2:
                    ldB(e, 1 - par, nx); issued += 1
            ldA(cp, nx); issued += 2
            if cp == 4:
                ldB(0, 1 - par, nx); ldB(1, 1 - par, nx); issued += 2
    SEQ = [(cp, e) for cp in range(7, -1, -1) for e in range(8 - cp)]
    GAP = {0: ('A', 0, 0, 0), 1: ('A', 0, 1, 0), 2: ('A', 7, 0, 1), 3: ('A', 7, 1, 1), 4: ('A', 6, 0, 1), 5: ('A', 6, 1, 1),
           6: ('A', 5, 0, 1), 7: ('A', 5, 1, 1), 8: ('B', 0, 0, 1), 10: ('A', 4, 0, 1), 11: ('A', 4, 1, 1), 12: ('B', 1, 0, 1),
           15: ('A', 3, 0, 1), 16: ('A', 3, 1, 1), 21: ('A', 2, 0, 1), 22: ('A', 2, 1, 1), 28: ('A', 1, 0, 1), 29: ('A', 1, 1, 1)}
    for e in range(2, 8): GAP[28 + e] = ('B', e, 0, 1)
    def waits_for(seq, gap):
        ops = []
        res = {}
        for rnd, (sq, gp) in enumerate(((SEQ, GAP), (SEQ, GAP), (seq, gap))):
            guaranteed = getattr(waits_for, 'g', -1) if False else None
            for i, (cp, e) in enumerate(sq):
                need = -1
                for nm in (('A', cp), ('B', e)):
                    idx = [k for k, (n, r) in enumerate(ops) if n == nm and r == rnd]
                    if idx: need = max(need, max(idx))
                if need > waits_for.done:
                    n = len(ops) - 1 - need
                    if rnd == 2: res[i] = min(n, 14)
                    waits_for.done = len(ops) - 1 - min(n, 14)
                if i in gp:
                    k, x, h, rel = gp[i]
                    ops.append(((k, x), rnd + rel))
        return res
    def residue_gen(par, cur, seq, gap, extra=None):
        waits_for.done = -1
        w = waits_for(seq, gap)
        for i, (cp, e) in enumerate(seq):
            if i in w: a(f's_waitcnt lgkmcnt({w[i]})')
            mf(cp, e, par)
            if i in gap:
                k, x, h, rel = gap[i]
                o = cur + 64 * rel
                if k == 'A': a(f'ds_read_b64 {V(AF+4*x+2*h,2)}, v{vAa} offset:{512*x+o+8*h}')
                else: ldB(x, (1 - par) if rel else par, o)
            if extra: extra(i)
    def residue(par, nx):
        if cfg.sched: residue_gen(par, nx - 64, SEQ, GAP)
        else: residue_old(par, nx)
    YP = 16
    a(f's_lshl_b32 s7, s{sCH}, 3')
    a(f's_add_u32 s7, s7, {WS_FY}')
    if cfg.peel: a(f's_sub_u32 s8, 4, s{sMODE}')
    else: a('s_mov_b32 s8, 4')
    a.label('L_conv')
    residue(0, 64)
    residue(1, 128)
    a(f'v_add_u32 v{vAa}, 128, v{vAa}')
    a(f'v_add_u32 v{vBa}, 128, v{vBa}')
    a(f's_add_u32 s{sCNT}, s{sCNT}, 1')
    a(f's_cmp_lt_u32 s{sCNT}, s8')
    a('s_cbranch_scc1 L_conv', noflush=True)
    a.label('L_conv_end')
    def ycvt(nt):
        a(f'v_cvt_pk_bf16_f32 v{YP+2*nt}, v{ACCB+4*nt}, v{ACCB+4*nt+1}')
        a(f'v_cvt_pk_bf16_f32 v{YP+2*nt+1}, v{ACCB+4*nt+2}, v{ACCB+4*nt+3}')
    def yswap(p):
        a(f'v_permlane16_swap_b32 v{YP+4*p}, v{YP+4*p+2}')
        a(f'v_permlane16_swap_b32 v{YP+4*p+1}, v{YP+4*p+3}')
    def ystore(p, sc):
        a(f'buffer_store_dwordx4 {V(YP+4*p,4)}, v{vY}, {S(SCR_)}, {mo[p]} offen{sc}')
    def yflag(sc):
        a('s_mov_b64 exec, 1')
        a('s_waitcnt vmcnt(0)')
        a(f'buffer_store_dwordx2 {V(vN,2)}, v{vZ}, {S(WS_)}, s7 offen{sc}')
        a('s_mov_b64 exec, -1')
    def yplain(sc):
        for nt in range(8): ycvt(nt)
        for p in range(4): yswap(p)
        for p in range(4): ystore(p, sc)
        yflag(sc)
    a(f's_cmp_eq_u32 s{sMODE}, 1')
    a('s_cbranch_scc0 L_c_ysl', noflush=True)
    if cfg.peel:
        residue(0, 64)
        seq = []
        for cp in range(7, 3, -1):
            for e in range(8 - cp): seq.append((cp, e))
        for nt in range(8):
            for cp in range(min(nt, 3), -1, -1): seq.append((cp, nt - cp))
        done_at = {}
        for i, (cp, e) in enumerate(seq): done_at[cp + e] = i
        todo = []
        for p in range(4):
            d0, d1 = done_at[2 * p], done_at[2 * p + 1]
            todo.append((d0 + 5, lambda p=p: ycvt(2 * p)))
            todo.append((d1 + 5, lambda p=p: ycvt(2 * p + 1)))
            todo.append((d1 + 7, lambda p=p: yswap(p)))
            todo.append((d1 + 8, lambda p=p: ystore(p, '')))
        def extra(i):
            while todo and todo[0][0] <= i:
                todo.pop(0)[1]()
        if cfg.sched:
            residue_gen(1, 64, seq, {0: ('A', 0, 0, 0), 1: ('A', 0, 1, 0)}, extra)
        else:
            for i, (cp, e) in enumerate(seq):
                if i == 0: a('s_waitcnt lgkmcnt(8)')
                if (cp, e) == (5, 2): a('s_waitcnt lgkmcnt(7)')
                if (cp, e) == (4, 3): a('s_waitcnt lgkmcnt(6)')
                if i == 10: a('s_waitcnt lgkmcnt(0)')
                mf(cp, e, 1)
                extra(i)
        ts(8)
        for _, f in todo: f()
        yflag('')
    else:
        ts(8)
        yplain('')
    main_lines = a.lines; a.lines = slow_lines; a.hist = []
    a.label('L_c_ysl')
    a('s_nop 7')
    yplain(' sc1')
    a('s_branch L_c_ydone')
    slow_lines = a.lines; a.lines = main_lines; a.hist = []
    a.label('L_c_ydone')
    ts(9)
    XR, XN, Z, YR, FT = 32, 96, 128, 160, 176
    MM, INV = XR + 24, XR + 32
    a('s_lshl_b32 s7, s3, 2')
    a(f'v_mov_b32 v{vT2}, s7')
    lds_wait(C_XT, 1, vT3, sCNT, vaddr=vT2)
    a(f's_mul_i32 s7, s3, {XTW}')
    a(f'v_lshlrev_b32 v{vF}, 3, v0')
    a(f'v_add_u32 v{vT3}, s7, v{vF}')
    for i in range(4):
        a(f'ds_read_b64 {V(XR+16+2*i,2)}, v{vT3} offset:{L_XT+4096+512*i}')
    a(f'v_add_u32 v{vT3}, s7, v{vTa}')
    for i in range(4):
        a(f'ds_read_b128 {V(XR+4*i,4)}, v{vT3} offset:{L_XT+1024*i}')
    a(f'ds_read_b128 {V(FT,4)}, v{vZ} offset:{L_SEL}')
    a('s_lshl_b32 s7, s4, 10')
    a(f's_lshl_b32 s8, s{sHC}, 9')
    a('s_add_u32 s7, s7, s8')
    a(f's_add_u32 s7, s7, {WS_FY}')
    a('s_waitcnt lgkmcnt(0)')
    a(f'v_readfirstlane_b32 s14, v{FT}')
    a(f'v_readfirstlane_b32 s15, v{FT+1}')
    def yload():
        for ch in range(4):
            a(f'buffer_load_dwordx4 {V(YR+4*ch,4)}, v{vS}, {S(SCR_)}, 0 offen{off(soff[ch])} sc1')
    def ypoll():
        a(f'buffer_load_dwordx2 {V(vP,2)}, v{vF}, {S(WS_)}, s7 offen sc1')
    if cfg.xnfast:
        PR = 56
        a(f's_mov_b32 s{sFET}, 0')
        YF = 72
        def yflags():
            a(f'buffer_load_dwordx4 {V(YF,4)}, v{vU}, {S(WS_)}, s7 offen sc1')
            a(f'buffer_load_dwordx4 {V(YF+4,4)}, v{vU}, {S(WS_)}, s7 offen offset:16 sc1')
        if cfg.yprog:
            a(f'v_lshlrev_b32 v{vU}, 5, v{vT0}')
            yflags()
        else: ypoll()
        for r in range(8):
            a(f'v_lshlrev_b32 v{PR+2*r}, 16, v{XR+16+r}')
            a(f'v_and_b32 v{PR+2*r+1}, 0xffff0000, v{XR+16+r}')
        for r in range(8):
            a(f'v_rcp_f32 v{PR+2*r}, v{PR+2*r}')
        for i in range(16): unpack(Z + 2 * i, Z + 2 * i + 1, XR + i)
        for r in range(8):
            a(f'v_mul_f32 v{PR+2*r+1}, -v{PR+2*r+1}, v{PR+2*r}')
        for r in range(8):
            for h in (0, 2):
                a(f'v_pk_fma_f32 {V(XN+4*r+h,2)}, {V(Z+4*r+h,2)}, {V(PR+2*r,2)}, {V(PR+2*r,2)} op_sel:[0,0,1] op_sel_hi:[1,0,1]')
        for i in range(16):
            pk('v_pk_add_f32', Z + 2 * i, Z + 2 * i, XN + 2 * i)
    else:
        for r in range(8):
            a(f'v_and_b32 v{MM+r}, 0xffff0000, v{XR+16+r}')
            a(f'v_lshlrev_b32 v{INV+r}, 16, v{XR+16+r}')
            a(f'v_rcp_f32 v{INV+r}, v{INV+r}')
        for i in range(16): unpack(Z + 2 * i, Z + 2 * i + 1, XR + i)
        def yload():
            for ch in range(4):
                a(f'buffer_load_dwordx4 {V(YR+4*ch,4)}, v{vS}, {S(SCR_)}, 0 offen{off(soff[ch])} sc1')
        def ypoll():
            a(f'buffer_load_dwordx2 {V(vP,2)}, v{vF}, {S(WS_)}, s7 offen sc1')
        a(f's_mov_b32 s{sFET}, 0')
        for r in range(8):
            if r == 0: ypoll()
            if r in (3, 6):
                lbl = f'L_c_yp{r}'
                a(f's_cmp_eq_u32 s{sFET}, 1')
                a(f's_cbranch_scc1 {lbl}')
                a('s_waitcnt vmcnt(0)')
                a(f'v_cmp_eq_u64 vcc, {V(vP,2)}, {V(vN,2)}')
                a('s_cmp_eq_u64 vcc, exec')
                a(f's_cbranch_scc1 {lbl}_f')
                ypoll()
                a(f's_branch {lbl}')
                a.label(f'{lbl}_f')
                yload()
                a(f's_mov_b32 s{sFET}, 1')
                a.label(lbl)
            for i in range(4): a(f'v_sub_f32 v{XN+4*r+i}, v{Z+4*r+i}, v{MM+r}')
            round2(XN + 4 * r, FT + 4); round2(XN + 4 * r + 2, FT + 5)
            for i in range(4): a(f'v_mul_f32 v{XN+4*r+i}, v{XN+4*r+i}, v{INV+r}')
            round2(XN + 4 * r, FT + 4); round2(XN + 4 * r + 2, FT + 5)
            pk('v_pk_add_f32', Z + 4 * r, Z + 4 * r, XN + 4 * r)
            pk('v_pk_add_f32', Z + 4 * r + 2, Z + 4 * r + 2, XN + 4 * r + 2)
    ts(10)
    a(f's_mov_b32 s{sCNT}, 0')
    if cfg.yprog:
        a('s_mov_b64 s[80:81], -1')
        a.label('L_c_polly')
        a('s_waitcnt vmcnt(0)')
        a(f'v_cmp_eq_u64 s[82:83], {V(YF,2)}, {V(vN,2)}')
        for i in range(1, 4):
            a(f'v_cmp_eq_u64 vcc, {V(YF+2*i,2)}, {V(vN,2)}')
            a('s_and_b64 s[82:83], s[82:83], vcc')
        a('s_and_b64 exec, s[82:83], s[80:81]')
        a('s_cbranch_execz L_c_ynone')
        yload()
        a.label('L_c_ynone')
        a('s_andn2_b64 s[80:81], s[80:81], s[82:83]')
        a('s_mov_b64 exec, s[80:81]')
        a('s_cbranch_execz L_c_yall')
        if cfg.ysleep: a(f's_sleep {cfg.ysleep}')
        yflags()
        a('s_mov_b64 exec, -1')
        a(f's_add_u32 s{sCNT}, s{sCNT}, 1')
        a(f's_cmp_lt_u32 s{sCNT}, {BIG*4}')
        a('s_cbranch_scc1 L_c_polly')
        a.label('L_c_yall')
        a('s_mov_b64 exec, -1')
    else:
        a(f's_cmp_eq_u32 s{sFET}, 1')
        a('s_cbranch_scc1 L_c_yok2')
        a.label('L_c_polly')
        a('s_waitcnt vmcnt(0)')
        a(f'v_cmp_ne_u64 vcc, {V(vP,2)}, {V(vN,2)}')
        a('s_cbranch_vccz L_c_yok')
        if cfg.ysleep: a(f's_sleep {cfg.ysleep}')
        if cfg.ymask: a('s_mov_b64 exec, vcc')
        ypoll()
        if cfg.ymask: a('s_mov_b64 exec, -1')
        a(f's_add_u32 s{sCNT}, s{sCNT}, 1')
        a(f's_cmp_lt_u32 s{sCNT}, {BIG*4}')
        a('s_cbranch_scc1 L_c_polly')
        a.label('L_c_yok')
        yload()
    a.label('L_c_yok2')
    ts(11)
    a('s_and_b32 s14, s14, 0x7ff')
    a('s_sub_u32 s14, 2047, s14')
    a('s_and_b32 s15, s15, 0x7ff')
    a('s_sub_u32 s15, 2047, s15')
    a('s_lshl_b32 s12, s5, 1')
    a(f's_add_u32 s12, s12, s{sHR}')
    a('s_lshr_b32 s14, s14, 5')
    a('s_lshr_b32 s15, s15, 5')
    a('s_waitcnt vmcnt(0)')
    ts(12)
    OP = 16
    for rp in range(4):
        Y0, Y1 = FT + 8 * (rp & 1), FT + 4 + 8 * (rp & 1)
        for ch in range(4): unpack(Y0 + ch, Y1 + ch, YR + 4 * ch + rp)
        un = [(2 * rp, 0, Y0), (2 * rp, 1, Y0 + 2), (2 * rp + 1, 0, Y1), (2 * rp + 1, 1, Y1 + 2)]
        for r, h, y in un:
            pk('v_pk_fma_f32', Z + 4 * r + 2 * h, y, XN + 4 * r + 2 * h, Z + 4 * r + 2 * h)
        for r, h, y in un:
            a(f'v_cvt_pk_bf16_f32 v{OP+2*r+h}, v{Z+4*r+2*h}, v{Z+4*r+2*h+1}')
        for r in (2 * rp, 2 * rp + 1):
            so, io = rowoff[r]
            a(f'buffer_store_dwordx2 {V(OP+2*r,2)}, v{vC}, {S(OUT_)}, {so} offen{off(io)}{cfg.polout}')
    ts(13)
    a('s_cmp_eq_u32 s14, s12')
    a('s_cbranch_scc1 L_c_spec')
    a('s_cmp_eq_u32 s15, s12')
    a('s_cbranch_scc0 L_c_done')
    a.label('L_c_spec')
    a(f'v_lshlrev_b32 v{vT3}, 11, v{vT1}')
    a(f'v_lshl_add_u32 v{vT3}, v{vT0}, 4, v{vT3}')
    a(f'v_add_u32 v{vT3}, s10, v{vT3}')
    for r in range(8):
        a(f'ds_write_b128 v{vT3}, {V(Z+4*r,4)} offset:{256*r}')
    a('s_waitcnt vmcnt(0)')
    lds_inc(C_ST, vT2)
    a('s_waitcnt lgkmcnt(0)')
    a.label('L_c_done')
    if cfg.wb:
        a('s_cmp_eq_u32 s3, 0')
        a('s_cbranch_scc0 L_c_nowb')
        if cfg.wb > 1:
            a(f's_and_b32 s7, s5, {cfg.wb-1}')
            a('s_cmp_eq_u32 s7, 0')
            a('s_cbranch_scc0 L_c_nowb')
        a('s_waitcnt vmcnt(0)')
        a('buffer_wbl2 sc1')
        a.label('L_c_nowb')
    ts(14)
    ts_store(WS_, 0)
    a('s_endpgm')
    a.lines = part1 + a.lines + partM + ['L_code_end:'] + slow_lines

    ref = open('cdna_kernels/%s.s.ref' % NAME).read()
    head = ref[:ref.index('; @launch')]
    out = head + f'; @launch grid=(256,1,1) block=(512,1,1) lds={LDS_BYTES}\n'
    out += '.amdgcn_target "amdgcn-amd-amdhsa--gfx950"\n.text\n'
    out += f'.globl {NAME}_kernel\n.p2align 8\n.type {NAME}_kernel,@function\n'
    out += a.text()
    out += f'''.section .rodata,"a"
.p2align 6
.amdhsa_kernel {NAME}_kernel
  .amdhsa_next_free_vgpr 256
  .amdhsa_next_free_sgpr 102
  .amdhsa_accum_offset 256
  .amdhsa_group_segment_fixed_size 0
  .amdhsa_kernarg_size 112
  .amdhsa_user_sgpr_count 2
  .amdhsa_user_sgpr_kernarg_segment_ptr 1
  .amdhsa_system_sgpr_workgroup_id_x 1
  .amdhsa_float_denorm_mode_32 3
.end_amdhsa_kernel
'''
    return out, a.count

if __name__ == '__main__':
    cfg = Cfg()
    outp = 'cdna_kernels/%s.s' % NAME
    for arg in sys.argv[1:]:
        k, v = arg.split('=', 1)
        if k == 'out': outp = v
        else:
            cur = getattr(cfg, k)
            if isinstance(cur, bool): v = v in ('1', 'True', 'true')
            elif isinstance(cur, int): v = int(v)
            elif isinstance(cur, str): v = (' ' + v.replace('+', ' ')) if v else ''
            setattr(cfg, k, v)
    text, n = gen(cfg)
    open(outp, 'w').write(text)
    print('wrote', outp, n, 'instructions', 'lds', LDS_BYTES)
```

```python
import sys, os
from asmlib import Asm

NAME = 'parallel_sum__ssm_conv_h3__moe_arch_mod__prompt'

class Cfg:
    ts = False
    exact_ks = 0
    pol = ''
    n1 = 40
    force_slow = False
    gsleep = 40
    presleep = 8
    pre0 = 0
    prio = 1
    mprio = 2
    cpf = 32
    hsmode = 2
    wpre = 10
    cfirst = 6
    lsleep = 0
    lstart = 16
    noconv = 0
    wearly = 0
    prewait = 4
    gpub = 1
    lpre = 12
    prepack = 1
    order = 0
    xnfast = 1
    pt = 1
    ysleep = 0
    dpsleep = 0
    ymask = 0
    tord = 1
    hse = 1
    pollat = 1
    cpre = 0
    dly = 0
    gretry = 2
    polpt = ''
    polh = ''
    peel = 1
    yprog = 0
    lowmid = 1
    sched = 1
    gfirst = 0
    cearly = 0
    lat0 = 0
    polout = ''
    wb = 0
    qfirst = 0
    qtpre = 0
    pearly = 8
    dnlin = 0
    tw = 0
    bal = 0
    dnpre = 0
    sfast = 1
    wsl = 1
    dyn = 0
    polw = ' nt'
    xgate = 1

WS_KEY = 0x0
WS_STAT = 0x2000
WS_FA = 0x8000
WS_FB = 0xA000
WS_FY = 0xC000
WS_PRE = 0x10000
WS_DP = 0x80000
WS_KB = 0x400000
WS_YB = 0x800000
WS_TS = 0x1000000
TSTR = 4160
TABW = 4 * TSTR
USTR = 4608
C_KEY, C_G, C_DN, C_XRDY, C_GATE, C_TRIG, C_PUB, C_MODE = range(8)
C_XT = 8
C_ST = 12
C_GT = 40
L_SEL = 64
L_KEYS = 96
L_STS = 128
ZERO_BYTES = 256
L_RG = 256
L_RD = L_RG + 4096
L_H = L_RD + 4096
L_XD = L_H + 1024
L_XT = L_XD + 2048
XTW = 4096 + 2048
L_U = L_XT + 4 * XTW
L_TAB = L_U + 4 * USTR
LDS_BYTES = L_TAB + 4 * TABW + 256
assert L_U % 16 == 0 and L_TAB % 16 == 0 and L_XT % 16 == 0
BIG = 60000

DOC = r'''
; ---------------------------------------------------------------------------------------------
;     tile's own output lines; flags; each wave then owns one channel: Toeplitz tables of ssm_k in
;     through the same lines; finally out = x + xn + xn*y for the tile.
;  M waves (0..3): LayerNorm statistics + router score of 8 rows, top-2 over all rows, gate/up
;     routed rows finished by the tile owner.
; ---------------------------------------------------------------------------------------------
'''

def srd(a, d, ptr, size):
    a(f's_mov_b32 s{d}, s{ptr}')
    a(f's_and_b32 s{d+1}, s{ptr+1}, 0xffff')
    a(f's_mov_b32 s{d+2}, {size}')
    a(f's_mov_b32 s{d+3}, 0x20000')
def srd_off(a, d, ptr, off, size):
    a(f's_add_u32 s{d}, s{ptr}, {off}')
    a(f's_addc_u32 s{d+1}, s{ptr+1}, 0')
    a(f's_and_b32 s{d+1}, s{d+1}, 0xffff')
    a(f's_mov_b32 s{d+2}, {size}')
    a(f's_mov_b32 s{d+3}, 0x20000')
def S(d): return f's[{d}:{d+3}]'
def V(b, n): return f'v[{b}:{b+n-1}]' if n > 1 else f'v{b}'
def off(o): return f' offset:{o}' if o else ''
P_Q, P_K, P_V, P_SH, P_HK, P_D, P_BX, P_WR, P_G, P_U, P_DN, P_OUT, P_DBG, P_WS = range(16, 44, 2)
VTS = 255

def gen(cfg):
    a = Asm()
    uid = [0]
    NT = cfg.pol
    vZ, vONE = 1, 13
    def ts(slot):
        if not cfg.ts: return
        a('s_memrealtime s[100:101]')
        a('s_waitcnt lgkmcnt(0)')
        a(f'v_writelane_b32 v{VTS}, s100, {slot}')
        if slot not in (7, 8): return
        a('s_memtime s[100:101]')
        a('s_waitcnt lgkmcnt(0)')
        a(f'v_writelane_b32 v{VTS}, s100, {slot+32}')
    def ts_store(srd_ws, wadd):
        if not cfg.ts: return
        a('s_lshl_b32 s100, s2, 3')
        a('s_add_u32 s100, s100, s3')
        if wadd: a(f's_add_u32 s100, s100, {wadd}')
        a('s_lshl_b32 s100, s100, 8')
        a(f's_add_u32 s100, s100, {WS_TS}')
        a('v_lshlrev_b32 v254, 2, v0')
        a(f'buffer_store_dword v{VTS}, v254, {S(srd_ws)}, s100 offen')
    def unpack(dlo, dhi, src):
        a(f'v_lshlrev_b32 v{dlo}, 16, v{src}')
        a(f'v_and_b32 v{dhi}, 0xffff0000, v{src}')
    def round2(p, tmp):
        a(f'v_cvt_pk_bf16_f32 v{tmp}, v{p}, v{p+1}')
        unpack(p, p + 1, tmp)
    def wave_reduce(op, regs, tmps):
        for mod in ('quad_perm:[1,0,3,2]', 'quad_perm:[2,3,0,1]', 'row_half_mirror', 'row_mirror'):
            for r in regs:
                a(f'{op}_dpp v{r}, v{r}, v{r} {mod} row_mask:0xf bank_mask:0xf')
        cross_rows(op, regs, tmps)
    def cross_rows(op, regs, tmps):
        for sw in ('v_permlane16_swap_b32', 'v_permlane32_swap_b32'):
            for r, t in zip(regs, tmps): a(f'v_mov_b32 v{t}, v{r}')
            for r, t in zip(regs, tmps): a(f'{sw} v{t}, v{r}')
            for r, t in zip(regs, tmps): a(f'{op} v{r}, v{r}, v{t}')
    def pk(op, d, x, y, z=None):
        if z is None: a(f'{op} {V(d,2)}, {V(x,2)}, {V(y,2)}')
        else: a(f'{op} {V(d,2)}, {V(x,2)}, {V(y,2)}, {V(z,2)}')
    def add2(d, x, y):
        a(f'v_add_f32 v{d}, v{x}, v{y}')
        a(f'v_add_f32 v{d+1}, v{x+1}, v{y+1}')
    def lds_wait(word, minval, vtmp, scnt, vaddr=None, sleep=None):
        uid[0] += 1; u = uid[0]
        va = vZ if vaddr is None else vaddr
        if sleep is None: sleep = cfg.wsl
        a(f's_mov_b32 s{scnt}, 0')
        a.label(f'L_lw{u}')
        a(f'ds_read_b32 v{vtmp}, v{va}{off(4*word)}')
        a('s_waitcnt lgkmcnt(0)')
        a(f'v_cmp_le_u32 vcc, {minval}, v{vtmp}')
        a(f's_cbranch_vccnz L_lw{u}_ok')
        a(f's_add_u32 s{scnt}, s{scnt}, 1')
        a(f's_sleep {sleep}')
        a(f's_cmp_lt_u32 s{scnt}, {BIG*8}')
        a(f's_cbranch_scc1 L_lw{u}')
        a.label(f'L_lw{u}_ok')
    def lds_inc(word, vaddr=None):
        va = vZ if vaddr is None else vaddr
        a('s_mov_b64 exec, 1')
        a(f'ds_add_u32 v{va}, v{vONE}{off(4*word)}')
        a('s_mov_b64 exec, -1')
    def lds_ticket(word, vtmp, sdst):
        a('s_mov_b64 exec, 1')
        a(f'ds_add_rtn_u32 v{vtmp}, v{vZ}, v{vONE}{off(4*word)}')
        a('s_waitcnt lgkmcnt(0)')
        a('s_mov_b64 exec, -1')
        a(f'v_readfirstlane_b32 s{sdst}, v{vtmp}')

    s4k, s8k, s12k, s1m, s2m, s3m = 84, 85, 86, 87, 88, 89
    rowoff = [('0', 0), ('0', 2048), (f's{s4k}', 0), (f's{s4k}', 2048), (f's{s8k}', 0), (f's{s8k}', 2048), (f's{s12k}', 0), (f's{s12k}', 2048)]
    sHC, sHR = 90, 91
    vT0, vT1, vC = 9, 10, 2

    a.label(f'{NAME}_kernel')
    if cfg.ts: a('s_memrealtime s[98:99]')
    a('s_cmp_ge_u32 s2, 256')
    a('s_cbranch_scc1 L_end')
    a('s_load_dwordx16 s[16:31], s[0:1], 0')
    a('s_load_dwordx8 s[32:39], s[0:1], 64')
    a('s_load_dwordx4 s[40:43], s[0:1], 96')
    a('v_lshrrev_b32 v3, 6, v0')
    a('v_lshlrev_b32 v4, 3, v0')
    a('v_and_b32 v0, 63, v0')
    a('v_readfirstlane_b32 s15, v3')
    a(f'v_mov_b32 v{vZ}, 0')
    a('v_mov_b32 v6, 0')
    a('v_mov_b32 v7, 0')
    a(f'v_min_u32 v4, {ZERO_BYTES-8}, v4')
    a('ds_write_b64 v4, v[6:7]')
    if cfg.cpf:
        a(f's_cmp_ge_u32 s2, {cfg.cpf}')
        a('s_cbranch_scc1 L_nocpf')
        a('s_cmp_ge_u32 s15, 2')
        a('s_cbranch_scc1 L_nocpf')
        a('s_getpc_b64 s[8:9]')
        a.label('L_pc')
        a('s_lshl_b32 s7, s15, 13')
        a('v_lshlrev_b32 v252, 7, v0')
        a('v_add_u32 v252, s7, v252')
        a('v_min_u32 v252, L_code_end-L_pc-4, v252')
        a('v_mov_b32 v253, s9')
        a('v_add_co_u32 v252, vcc, s8, v252')
        a('v_addc_co_u32 v253, vcc, 0, v253, vcc')
        a('global_load_dword v251, v[252:253], off')
        a.label('L_nocpf')
    a('s_and_b32 s4, s2, 7')
    a('s_lshr_b32 s5, s2, 3')
    if cfg.ts: a(f'v_mov_b32 v{VTS}, 0')
    a('s_and_b32 s3, s15, 3')
    a(f's_and_b32 s{sHC}, s3, 1')
    a(f's_lshr_b32 s{sHR}, s3, 1')
    a('s_lshl_b32 s6, s5, 17')
    a(f's_lshl_b32 s7, s{sHR}, 16')
    a('s_add_u32 s6, s6, s7')
    a('s_lshl_b32 s7, s4, 8')
    a('s_add_u32 s6, s6, s7')
    a(f's_lshl_b32 s7, s{sHC}, 7')
    a('s_add_u32 s6, s6, s7')
    a(f'v_and_b32 v{vT0}, 15, v0')
    a(f'v_lshrrev_b32 v{vT1}, 4, v0')
    a(f'v_lshlrev_b32 v{vC}, 14, v{vT1}')
    a(f'v_lshl_add_u32 v{vC}, v{vT0}, 3, v{vC}')
    a(f'v_add_u32 v{vC}, s6, v{vC}')
    a(f'v_mov_b32 v{vONE}, 1')
    a(f's_mov_b32 s{s4k}, 4096')
    a(f's_mov_b32 s{s8k}, 8192')
    a(f's_mov_b32 s{s12k}, 12288')
    a('s_lshl_b32 s8, s2, 14')
    a('s_lshl_b32 s7, s3, 12')
    a('s_add_u32 s8, s8, s7')
    a('v_lshlrev_b32 v3, 4, v0')
    a(f'v_subrev_u32 v11, 6144, v{vC}')
    a(f'v_subrev_u32 v12, 2048, v{vC}')
    if cfg.ts:
        a('s_memrealtime s[96:97]')
    a('s_waitcnt lgkmcnt(0)')
    if cfg.ts:
        a(f'v_writelane_b32 v{VTS}, s98, 16')
        a(f'v_writelane_b32 v{VTS}, s96, 17')
        ts(18)
    if not cfg.qfirst: a('s_barrier')
    if cfg.ts: ts(19)
    if cfg.dly == 4:
        a('s_memrealtime s[100:101]')
        a('s_waitcnt lgkmcnt(0)')
        a('s_add_u32 s99, s100, 150')
        a.label('L_dly')
        a('s_sleep 1')
        a('s_memrealtime s[100:101]')
        a('s_waitcnt lgkmcnt(0)')
        a('s_sub_u32 s100, s100, s99')
        a('s_cmp_lt_i32 s100, 0')
        a('s_cbranch_scc1 L_dly')
    a('s_cmp_ge_u32 s15, 4')
    a('s_cbranch_scc1 L_C')

    Q_, WR_, WG_, DN_, WS_, DBG_, OUTM_ = range(44, 72, 4)
    sKQ, sMAT, sFB, sCNT, sI0, sI1, sLAST = 72, 73, 74, 75, 76, 77, 78
    sGO, sDO = 79, 68 + 24
    sT = 94
    vQ, vT2, vT3, vGa, vDa, vSA = 3, 5, 6, 7, 8, 11
    vM, vG = vT0, vT1
    vN = 14; vN2 = 248
    QR, WRR = 16, 32
    X = 40
    QT, ST = 16, 72
    R_ = 88
    GW = 104; DW = 168; MK = 196; BFm = 200; ACC = 208; STG = 212; XD = 216; GT = 232
    vRGa, vRDa, vHw, vHr, vDPa = 240, 241, 242, 243, 244
    srd(a, Q_, P_Q, 0x400000)
    for i in range(4):
        a(f'buffer_load_dwordx4 {V(QR+4*i,4)}, v{vQ}, {S(Q_)}, s8 offen{off(1024*i)}{NT}')
    if cfg.qfirst == 1: a('s_barrier')
    srd(a, DBG_, P_DBG, 256)
    a('s_add_u32 s7, s2, s3')
    a('s_cmp_eq_u32 s7, 0')
    a('s_cbranch_scc0 L_m_nononce')
    a('s_memrealtime s[8:9]')
    a('s_waitcnt lgkmcnt(0)')
    a('s_and_b32 s8, s8, -16')
    a(f'v_mov_b32 v{vN}, s8')
    a(f'v_mov_b32 v{vN+1}, s9')
    a('s_mov_b64 exec, 1')
    a(f'buffer_store_dwordx2 {V(vN,2)}, v{vZ}, {S(DBG_)}, 0 offen sc1')
    a('s_mov_b64 exec, -1')
    a.label('L_m_nononce')
    srd(a, WR_, P_WR, 2048)
    a(f'buffer_load_dwordx4 {V(WRR,4)}, v{vQ}, {S(WR_)}, 0 offen')
    a(f'buffer_load_dwordx4 {V(WRR+4,4)}, v{vQ}, {S(WR_)}, 0 offen offset:1024')
    if cfg.qfirst == 2: a('s_barrier')
    a('s_branch L_M2')
    part1 = a.lines; a.lines = []; a.hist = []
    a.label('L_M2')
    ts(0)
    srd(a, WS_, P_WS, 0x10000000)
    srd(a, DN_, P_DN, 3584 * 2048)
    srd(a, OUTM_, P_OUT, 0x400000)
    sG = 93
    def grole():
        a(f's_and_b32 s{sKQ}, s{sG}, 3')
        a(f's_lshr_b32 s9, s{sG}, 2')
        a(f's_and_b32 s{sMAT}, s9, 1')
        a(f's_lshr_b32 s{sFB}, s9, 1')
        a(f's_cmp_eq_u32 s{sMAT}, 0')
        a(f's_cselect_b32 s{WG_}, s{P_G}, s{P_U}')
        a(f's_cselect_b32 s{WG_+1}, s{P_G+1}, s{P_U+1}')
        a(f's_and_b32 s{WG_+1}, s{WG_+1}, 0xffff')
        a(f's_cmp_lt_u32 s{sG}, 224')
        a(f's_cselect_b32 s{WG_+2}, {1024*7168}, 0')
        a(f's_mov_b32 s{WG_+3}, 0x20000')
        a(f's_lshl_b32 s9, s{sKQ}, 8')
        a('s_lshl_b32 s8, s3, 6')
        a('s_add_u32 s9, s9, s8')
        a('s_mul_i32 s9, s9, 7168')
        a(f's_lshl_b32 s8, s{sFB}, 8')
        a(f's_add_u32 s{sGO}, s9, s8')
    def gticket(vt):
        if not cfg.dyn: return
        lds_wait(C_GT, 1, vt, sCNT)
        a(f'v_readfirstlane_b32 s{sG}, v{vt}')
        a(f's_sub_u32 s{sG}, s{sG}, 1')
        a(f's_and_b32 s{sG}, s{sG}, 0xff')
        grole()
    if not cfg.dyn:
        if cfg.bal:
            cnt = {1: [31,31,28,31,22,28,22,31], 2: [30,30,28,30,24,28,24,30], 3: [29,29,28,29,26,28,26,29], 4: [32,32,28,30,20,28,24,30]}[cfg.bal]
            assert sum(cnt) == 224
            base = [sum(cnt[:i]) for i in range(8)]
            pk8 = lambda v: (sum(x << (8 * i) for i, x in enumerate(v[:4])), sum(x << (8 * i) for i, x in enumerate(v[4:])))
            for reg, vals in ((8, cnt), (10, base)):
                lo, hi = pk8(vals)
                a(f's_mov_b32 s{reg}, {lo}')
                a(f's_mov_b32 s{reg+1}, {hi}')
            a('s_lshl_b32 s7, s4, 3')
            a('s_lshr_b64 s[8:9], s[8:9], s7')
            a('s_lshr_b64 s[10:11], s[10:11], s7')
            a('s_and_b32 s8, s8, 0xff')
            a('s_and_b32 s10, s10, 0xff')
            a(f's_add_u32 s{sG}, s10, s5')
            a('s_cmp_lt_u32 s5, s8')
            a(f's_cselect_b32 s{sG}, s{sG}, 255')
        else:
            a(f's_mov_b32 s{sG}, s2')
        grole()
    a(f'v_and_b32 v{vT2}, 7, v0')
    a(f'v_and_b32 v{vT3}, 1, v0')
    a(f'v_lshlrev_b32 v{vT3}, 4, v{vT3}')
    a(f'v_mov_b32 v{R_}, 0xffff')
    a(f'v_lshlrev_b32 v{vT3}, v{vT3}, v{R_}')
    a(f'v_lshrrev_b32 v{R_}, 1, v{vT2}')
    for jd in range(4):
        a(f'v_cmp_eq_u32 vcc, {jd}, v{R_}')
        a(f'v_cndmask_b32 v{MK+jd}, 0, v{vT3}, vcc')
    a(f'v_lshrrev_b32 v{vT3}, 3, v{vM}')
    a(f'v_lshlrev_b32 v{vRGa}, 8, v{vG}')
    a(f'v_lshl_add_u32 v{vRGa}, v{vT2}, 3, v{vRGa}')
    a(f'v_lshl_add_u32 v{vRGa}, v{vT3}, 2, v{vRGa}')
    a(f'v_lshlrev_b32 v{vRDa}, 7, v{vG}')
    a(f'v_lshl_add_u32 v{vRDa}, v{vT2}, 2, v{vRDa}')
    a(f'v_lshl_add_u32 v{vRDa}, v{vT3}, 9, v{vRDa}')
    a('s_lshl_b32 s7, s3, 10')
    a(f'v_add_u32 v{vRGa}, s7, v{vRGa}')
    a(f'v_add_u32 v{vRDa}, s7, v{vRDa}')
    a('s_lshl_b32 s7, s3, 8')
    a(f'v_lshlrev_b32 v{vHr}, 7, v{vT3}')
    a(f'v_lshl_add_u32 v{vHr}, v{vG}, 5, v{vHr}')
    a(f'v_add_u32 v{vHr}, s7, v{vHr}')
    vPRa = 245
    a(f'v_lshrrev_b32 v{R_}, 1, v0')
    a(f'v_min_u32 v{R_}, 27, v{R_}')
    a(f'v_and_b32 v{vHw}, 3, v{R_}')
    a(f'v_lshlrev_b32 v{vHw}, 5, v{vHw}')
    a(f'v_lshrrev_b32 v{R_+1}, 2, v{R_}')
    a(f'v_lshl_add_u32 v{vHw}, v{R_+1}, 2, v{vHw}')
    a(f'v_add_u32 v{vHw}, s7, v{vHw}')
    a(f'v_and_b32 v{vPRa}, 1, v0')
    a(f'v_mul_u32_u24 v{vPRa}, {4*3584}, v{vPRa}')
    a(f'v_add_u32 v{vPRa}, v{vPRa}, v{R_}')
    if cfg.prepack:
        a(f'v_lshrrev_b32 v{vPRa}, 1, v{vPRa}')
        a(f'v_and_b32 v246, 1, v{R_}')
    a(f'v_lshlrev_b32 v{vPRa}, 4, v{vPRa}')
    a(f'v_mul_u32_u24 v{vGa}, {16*7168}, v{vG}')
    a(f'v_lshl_add_u32 v{vGa}, v{vM}, 4, v{vGa}')
    a('s_mul_i32 s7, s5, 112')
    a('s_mul_i32 s8, s3, 28')
    a('s_add_u32 s14, s7, s8')
    a('s_lshl_b32 s7, s14, 11')
    a('s_lshl_b32 s8, s4, 8')
    a(f's_add_u32 s{sDO}, s7, s8')
    a(f'v_lshlrev_b32 v{vDa}, 11, v{vG}')
    a(f'v_lshl_add_u32 v{vDa}, v{vM}, 4, v{vDa}')
    if cfg.dnlin:
        a('s_lshl_b32 s7, s2, 2')
        a('s_add_u32 s7, s7, s3')
        a(f's_mul_i32 s{sDO}, s7, 7168')
        a(f'v_lshlrev_b32 v{vDa}, 4, v0')
    GB = 8 if cfg.prepack else 16
    a(f's_mul_i32 s80, s14, {GB}')
    a(f's_add_u32 s80, s80, {WS_PRE}')
    a(f's_add_u32 s81, s80, {3584*GB}')
    a(f's_add_u32 s82, s80, {2*3584*GB}')
    a(f's_add_u32 s83, s80, {3*3584*GB}')
    a('s_lshl_b32 s7, s2, 3')
    a('s_lshl_b32 s8, s3, 1')
    a('s_add_u32 s7, s7, s8')
    a('s_sub_u32 s10, 2047, s7')
    a('s_sub_u32 s11, 2046, s7')
    a(f'v_mov_b32 v{X}, 0x3f803f80')
    a('s_lshl_b32 s15, s5, 9')
    a(f's_lshl_b32 s7, s{sHR}, 8')
    a('s_add_u32 s15, s15, s7')
    a(f's_add_u32 s15, s15, {WS_STAT}')
    a(f'v_lshlrev_b32 v{vSA}, 6, v{vG}')
    a('s_lshl_b32 s7, s4, 6')
    a('s_add_u32 s7, s7, s5')
    a('s_lshl_b32 s7, s7, 10')
    a(f's_add_u32 s12, s7, {WS_DP}')
    a('s_add_u32 s13, s12, 32768')
    a(f'v_lshlrev_b32 v{vDPa}, 7, v{vT2}')
    a(f'v_lshl_add_u32 v{vDPa}, v{vT3}, 15, v{vDPa}')
    vRA = GT + 4
    a('s_lshl_b32 s7, s2, 6')
    a(f's_add_u32 s7, s7, {WS_STAT}')
    a(f'v_and_b32 v{vT2}, 3, v0')
    a(f'v_lshlrev_b32 v{vRA}, 4, v{vT2}')
    a(f'v_add_u32 v{vRA}, s7, v{vRA}')
    a('s_lshl_b32 s7, s2, 4')
    a(f'v_mov_b32 v{vT3}, s7')
    a('v_cmp_eq_u32 vcc, 4, v0')
    a(f'v_cndmask_b32 v{vRA}, v{vRA}, v{vT3}, vcc')
    a(f'v_lshlrev_b32 v{GT+5}, 3, v{vT2}')
    a('s_lshl_b32 s8, s3, 3')
    a(f'v_mov_b32 v{vT2}, s8')
    def wload(t):
        if t < 16:
            a(f'buffer_load_dwordx4 {V(GW+4*t,4)}, v{vGa}, {S(WG_)}, s{sGO} offen{cfg.polw}')
            a(f's_add_u32 s{sGO}, s{sGO}, 7168')
        else:
            a(f'buffer_load_dwordx4 {V(DW+4*(t-16),4)}, v{vDa}, {S(DN_)}, s{sDO} offen{cfg.polw}')
            a(f's_add_u32 s{sDO}, s{sDO}, {1024 if cfg.dnlin else 8192}')
    ntw = 0
    if cfg.tw:
        a('s_mov_b64 exec, 1')
        a(f'buffer_load_dword v250, v{vDa}, {S(DN_)}, s{sDO} offen'); ntw += 1
        if cfg.tw > 1:
            a(f'buffer_load_dword v250, v{vGa}, {S(WG_)}, s{sGO} offen'); ntw += 1
            a(f's_mov_b32 s7, {WS_PRE - 128}')
            a(f'buffer_load_dword v250, v{vZ}, {S(WS_)}, s7 offen'); ntw += 1
        a('s_mov_b64 exec, -1')
    if cfg.mprio: a(f's_setprio {cfg.mprio}')
    a(f's_waitcnt vmcnt({ntw})')
    ts(1)
    for i in range(8):
        for row in range(2):
            q = QR + 8 * row + i
            for k, src in ((0, f'v{X}'), (2, f'v{q}'), (4, f'v{WRR+i}')):
                c0 = '0' if i == 0 else f'v{R_+k+row}'
                a(f'v_dot2_f32_bf16 v{R_+k+row}, v{q}, {src}, {c0}')
        c0 = '0' if i == 0 else f'v{R_+6}'
        a(f'v_dot2_f32_bf16 v{R_+6}, v{WRR+i}, v{X}, {c0}')
    a(f's_memrealtime s[{sT}:{sT+1}]')
    wave_reduce('v_add_f32', [R_ + i for i in range(7)], [X + 2 + i for i in range(7)])
    for row in range(2):
        a(f'v_mul_f32 v{R_+row}, 0x3a800000, v{R_+row}')
        a(f'v_mul_f32 v{R_+2+row}, 0x3a800000, v{R_+2+row}')
    for row in range(2):
        a(f'v_fma_f32 v{R_+2+row}, -v{R_+row}, v{R_+row}, v{R_+2+row}')
        a(f'v_max_f32 v{R_+2+row}, 0, v{R_+2+row}')
    round2(R_ + 2, R_ + 8)
    round2(R_, R_ + 9)
    for row in range(2):
        a(f'v_add_f32 v{R_+2+row}, 0x3727c5ac, v{R_+2+row}')
    round2(R_ + 2, R_ + 8)
    for row in range(2):
        a(f'v_sqrt_f32 v{R_+2+row}, v{R_+2+row}')
    round2(R_ + 2, R_ + 8)
    for row in range(2):
        a(f'v_rcp_f32 v{R_+10+row}, v{R_+2+row}')
        a(f'v_fma_f32 v{R_+4+row}, -v{R_+row}, v{R_+6}, v{R_+4+row}')
    for row in range(2):
        a(f'v_lshrrev_b32 v{STG+row}, 16, v{R_+2+row}')
        a(f'v_or_b32 v{STG+row}, v{STG+row}, v{R_+row}')
        a(f'v_mul_f32 v{R_+4+row}, v{R_+4+row}, v{R_+10+row}')
    round2(R_ + 4, R_ + 8)
    for row in range(2):
        r = R_ + 4 + row
        a(f'v_ashrrev_i32 v{R_+8}, 31, v{r}')
        a(f'v_or_b32 v{R_+8}, 0x80000000, v{R_+8}')
        a(f'v_xor_b32 v{r}, v{r}, v{R_+8}')
        a(f'v_and_b32 v{r}, 0xffff0000, v{r}')
        a(f'v_or_b32 v{r}, s{10+row}, v{r}')
    a('s_mov_b64 exec, 1')
    a(f'ds_write_b64 v{vT2}, {V(R_+4,2)} offset:{L_KEYS}')
    a(f'ds_write_b64 v{vT2}, {V(STG,2)} offset:{L_STS}')
    lds_ticket(C_KEY, R_ + 2, sLAST)
    ts(2)
    a(f's_cmp_eq_u32 s{sLAST}, 3')
    a('s_cbranch_scc1 L_m_ctrl')
    if cfg.mprio: a('s_setprio 0')
    if cfg.dyn:
        a(f's_cmp_eq_u32 s{sLAST}, 0')
        a('s_cbranch_scc0 L_m_notk')
        a(f's_mov_b32 s{sG}, 1')
        a(f's_atomic_add s{sG}, s[{P_DBG}:{P_DBG+1}], 128 glc')
        a('s_waitcnt lgkmcnt(0)')
        a(f's_add_u32 s{sG}, s{sG}, 1')
        a(f'v_mov_b32 v{vT3}, s{sG}')
        a(f'ds_write_b32 v{vZ}, v{vT3} offset:{4*C_GT}')
        a.label('L_m_notk')
    gticket(vT3)
    NG = 5 if cfg.xgate else 4
    def qtl():
        for r in range(8):
            so, io = rowoff[r]
            a(f'buffer_load_dwordx2 {V(QT+2*r,2)}, v{vC}, {S(Q_)}, {so} offen{off(io)}{NT}')
    w0 = 0
    if cfg.hsmode == 2 and (cfg.wpre or cfg.dnpre):
        lds_wait(C_TRIG, 5 if cfg.gfirst else 4, vT3, sCNT)
        if cfg.qtpre: qtl()
        if cfg.dnpre:
            for t in range(16, 23): wload(t)
        for t in range(cfg.wpre): wload(t)
        w0 = cfg.wpre
    if cfg.hsmode == 3 and cfg.wearly:
        lds_wait(C_TRIG, 5, vT3, sCNT)
        for t in range(cfg.wearly): wload(t)
        w0 = cfg.wearly
    lds_wait(C_GATE, NG, vT3, sCNT)
    for t in range(w0, 16): wload(t)
    a('s_branch L_m_join')
    a.label('L_m_ctrl')
    KG = GT
    a(f'ds_read_b128 {V(R_,4)}, v{vZ} offset:{L_KEYS}')
    a(f'ds_read_b128 {V(R_+4,4)}, v{vZ} offset:{L_KEYS+16}')
    a(f'ds_read_b64 {V(R_+8,2)}, v{GT+5} offset:{L_STS}')
    a('v_cmp_eq_u32 vcc, 4, v0')
    a(f'v_mov_b32 v{KG+2}, s{sT}')
    a(f'v_mov_b32 v{KG+3}, s{sT+1}')
    a('s_waitcnt lgkmcnt(0)')
    def top2(m1, m2, keys):
        a(f'v_max_u32 v{m1}, v{keys[0]}, v{keys[1]}')
        a(f'v_min_u32 v{m2}, v{keys[0]}, v{keys[1]}')
        for kx in keys[2:]:
            a(f'v_med3_u32 v{m2}, v{m1}, v{m2}, v{kx}')
            a(f'v_max_u32 v{m1}, v{m1}, v{kx}')
    top2(KG, KG + 1, [R_ + i for i in range(8)])
    a(f'v_cndmask_b32 v{KG}, v{R_+8}, v{KG}, vcc')
    a(f'v_cndmask_b32 v{KG+1}, v{R_+9}, v{KG+1}, vcc')
    a('s_mov_b64 exec, 31')
    a(f'buffer_store_dwordx4 {V(KG,4)}, v{vRA}, {S(WS_)}, 0 offen sc1')
    a('s_mov_b64 exec, -1')
    if cfg.hsmode == 3 and cfg.wearly: lds_inc(C_TRIG)
    ts(11)
    g = cfg.gsleep
    while g > 0:
        a(f's_sleep {min(g,120)}'); g -= 120
    if cfg.dly == 3:
        a('s_memrealtime s[100:101]')
        a('s_waitcnt lgkmcnt(0)')
        a('s_add_u32 s99, s100, 150')
        a.label('L_dly')
        a('s_sleep 1')
        a('s_memrealtime s[100:101]')
        a('s_waitcnt lgkmcnt(0)')
        a('s_sub_u32 s100, s100, s99')
        a('s_cmp_lt_i32 s100, 0')
        a('s_cbranch_scc1 L_dly')
    G4 = X
    def gloads():
        a(f'buffer_load_dwordx2 {V(vN,2)}, v{vZ}, {S(DBG_)}, 0 offen sc1')
        for i in range(4):
            a(f'buffer_load_dwordx4 {V(G4+4*i,4)}, v{vQ}, {S(WS_)}, 0 offen{off(1024*i)} sc1')
    if cfg.gfirst or cfg.cearly:
        gloads()
        if cfg.gfirst: lds_inc(C_TRIG)
        if cfg.cearly:
            lds_wait(C_TRIG, 5 if cfg.gfirst else 4, R_ + 10, sCNT)
            for t in range(cfg.cearly): wload(t)
        a(f's_mov_b32 s{sCNT}, 0')
        a(f's_waitcnt vmcnt({cfg.cearly})')
        a('s_branch L_m_gather1')
    a(f's_mov_b32 s{sCNT}, 0')
    a.label('L_m_gather')
    gloads()
    a('s_waitcnt vmcnt(0)')
    a.label('L_m_gather1')
    a(f'v_cmp_ne_u64 vcc, 0, {V(vN,2)}')
    a('s_cbranch_vccz L_m_gather_next')
    a(f'v_cmp_ge_u64 vcc, {V(KG+2,2)}, {V(vN,2)}')
    a('s_cbranch_vccnz L_m_gather_chk')
    a(f'v_mov_b32 v{KG+2}, v{vN}')
    a(f'v_mov_b32 v{KG+3}, v{vN+1}')
    a('s_mov_b64 exec, 31')
    a(f'buffer_store_dwordx4 {V(KG,4)}, v{vRA}, {S(WS_)}, 0 offen sc1')
    a('s_mov_b64 exec, -1')
    a.label('L_m_gather_chk')
    a(f'v_add_co_u32 v{vN2}, vcc, 0x4000000, v{vN}')
    a(f'v_addc_co_u32 v{vN2+1}, vcc, 0, v{vN+1}, vcc')
    def win_check(regs):
        a('s_mov_b64 s[8:9], exec')
        for r in regs:
            a(f'v_cmp_ge_u64 vcc, {V(r,2)}, {V(vN,2)}')
            a('s_and_b64 s[8:9], s[8:9], vcc')
            a(f'v_cmp_lt_u64 vcc, {V(r,2)}, {V(vN2,2)}')
            a('s_and_b64 s[8:9], s[8:9], vcc')
        a('s_cmp_eq_u64 s[8:9], exec')
    win_check([G4 + 4 * i + 2 for i in range(4)])
    a('s_cbranch_scc1 L_m_gather_ok')
    a.label('L_m_gather_next')
    a(f's_add_u32 s{sCNT}, s{sCNT}, 1')
    a(f's_sleep {cfg.gretry}')
    a(f's_cmp_lt_u32 s{sCNT}, {BIG}')
    a('s_cbranch_scc1 L_m_gather')
    a(f'v_or_b32 v{vN}, 16, v{vN}')
    a.label('L_m_gather_ok')
    ts(3)
    if cfg.ts: a(f'v_writelane_b32 v{VTS}, s{sCNT}, 30')
    top2(R_, R_ + 1, [G4 + 4 * i + h for i in range(4) for h in range(2)])
    a(f'v_mov_b32 v{R_+4}, v{R_}')
    wave_reduce('v_max_u32', [R_ + 4], [R_ + 6])
    a(f'v_cmp_eq_u32 vcc, v{R_}, v{R_+4}')
    a(f'v_cndmask_b32 v{R_+5}, v{R_}, v{R_+1}, vcc')
    wave_reduce('v_max_u32', [R_ + 5], [R_ + 6])
    gticket(R_ + 8)
    a('v_cmp_le_u32 vcc, 32, v0')
    a(f'v_cndmask_b32 v{R_}, v{R_+4}, v{R_+5}, vcc')
    a(f'v_and_b32 v{R_}, 0x7ff, v{R_}')
    a(f'v_sub_u32 v{R_}, 2047, v{R_}')
    a(f'v_and_b32 v{vT2}, 31, v0')
    a(f'v_lshlrev_b32 v{vT2}, 4, v{vT2}')
    a(f'v_lshl_add_u32 v{vT2}, v{R_}, 11, v{vT2}')
    a(f's_lshl_b32 s7, s{sKQ}, 9')
    a(f'buffer_load_dwordx4 {V(X,4)}, v{vT2}, {S(Q_)}, s7 offen')
    a(f'v_lshrrev_b32 v{vT3}, 1, v{R_}')
    a(f'v_lshlrev_b32 v{vT3}, 4, v{vT3}')
    a(f's_mov_b32 s7, {WS_STAT}')
    a(f'buffer_load_dwordx4 {V(X+4,4)}, v{vT3}, {S(WS_)}, s7 offen sc1')
    a(f'v_mov_b32 v{R_+6}, v{vN}')
    a(f'v_mov_b32 v{R_+7}, v{vN+1}')
    a('s_mov_b64 exec, 1')
    a(f'ds_write_b128 v{vZ}, {V(R_+4,4)} offset:{L_SEL}')
    if cfg.xgate: a(f'ds_add_u32 v{vZ}, v{vONE} offset:{4*C_GATE}')
    a('s_mov_b64 exec, -1')
    c0 = cfg.cearly; c1 = min(16, c0 + cfg.cfirst)
    if cfg.qtpre: qtl()
    if cfg.dnpre:
        for t in range(16, 23): wload(t)
    lds_wait(C_GATE, NG, R_ + 8, sCNT)
    for t in range(c0, c1): wload(t)
    a(f's_waitcnt vmcnt({c1 - c0 + (8 if cfg.qtpre else 0) + (7 if cfg.dnpre else 0)})')
    a(f's_mov_b32 s{sCNT}, 0')
    a.label('L_m_xstat')
    win_check([X + 6])
    a('s_cbranch_scc1 L_m_xstat_ok')
    a('s_sleep 4')
    a(f'buffer_load_dwordx4 {V(X+4,4)}, v{vT3}, {S(WS_)}, s7 offen sc1')
    a(f's_add_u32 s{sCNT}, s{sCNT}, 1')
    a('s_waitcnt vmcnt(0)')
    a(f's_cmp_lt_u32 s{sCNT}, {BIG}')
    a('s_cbranch_scc1 L_m_xstat')
    a.label('L_m_xstat_ok')
    ts(4)
    a(f'v_and_b32 v{vT2}, 1, v{R_}')
    a(f'v_cmp_eq_u32 vcc, 1, v{vT2}')
    a(f'v_cndmask_b32 v{vT2}, v{X+4}, v{X+5}, vcc')
    a(f'v_and_b32 v{R_+1}, 0xffff0000, v{vT2}')
    a(f'v_lshlrev_b32 v{R_+2}, 16, v{vT2}')
    a(f'v_rcp_f32 v{R_+2}, v{R_+2}')
    for i in range(4): unpack(X + 8 + 2 * i, X + 9 + 2 * i, X + i)
    for i in range(8): a(f'v_sub_f32 v{X+8+i}, v{X+8+i}, v{R_+1}')
    for i in range(4): round2(X + 8 + 2 * i, X + i)
    for i in range(8): a(f'v_mul_f32 v{X+8+i}, v{X+8+i}, v{R_+2}')
    for i in range(8): a(f'v_cvt_pk_bf16_f32 v{X+8+i}, v{X+8+i}, v{X+8+i}')
    a(f'v_lshlrev_b32 v{vT2}, 5, v0')
    a(f'ds_write_b128 v{vT2}, {V(X+8,4)} offset:{L_XD}')
    a(f'ds_write_b128 v{vT2}, {V(X+12,4)} offset:{L_XD+16}')
    lds_inc(C_XRDY)
    for t in range(c1, 16): wload(t)
    a.label('L_m_join')
    later = []
    for r in range(8):
        so, io = rowoff[r]
        later.append(lambda r=r, so=so, io=io: a(f'buffer_load_dwordx2 {V(QT+2*r,2)}, v{vC}, {S(Q_)}, {so} offen{off(io)}{NT}'))
    for i in range(4):
        later.append(lambda i=i: a(f'buffer_load_dwordx4 {V(ST+4*i,4)}, v{vSA}, {S(WS_)}, s15 offen{off(16*i)} sc1'))
    dn = [] if cfg.dnpre else [lambda t=t: wload(t) for t in range(16, 23)]
    dn.append(lambda: a(f'buffer_load_dword v250, v{vDPa}, {S(WS_)}, s12 offen sc1'))
    later = (dn + later) if cfg.order else (later + dn)
    if cfg.qtpre: later = later[8:]
    for _ in range(cfg.lat0): later.pop(0)()
    lds_wait(C_XRDY, 1, vT3, sCNT)
    if cfg.mprio: a(f's_setprio {cfg.mprio}')
    a(f'ds_read_b128 {V(R_,4)}, v{vZ} offset:{L_SEL}')
    a(f'v_lshrrev_b32 v{vT2}, 3, v{vM}')
    a(f'v_lshlrev_b32 v{vT2}, 10, v{vT2}')
    a(f'v_lshl_add_u32 v{vT2}, v{vG}, 6, v{vT2}')
    a('s_lshl_b32 s7, s3, 8')
    a(f'v_add_u32 v{vT2}, s7, v{vT2}')
    for i in range(4):
        a(f'ds_read_b128 {V(XD+4*i,4)}, v{vT2} offset:{L_XD+16*i}')
    a('s_waitcnt lgkmcnt(0)')
    a(f'v_mov_b32 v{vN}, v{R_+2}')
    a(f'v_mov_b32 v{vN+1}, v{R_+3}')
    a(f'v_readfirstlane_b32 s{sI0}, v{R_}')
    a(f'v_readfirstlane_b32 s{sI1}, v{R_+1}')
    a(f'v_add_co_u32 v{vN2}, vcc, 0x4000000, v{vN}')
    a(f'v_addc_co_u32 v{vN2+1}, vcc, 0, v{vN+1}, vcc')
    for h in range(2):
        a(f'v_mov_b32 v{GT+4*h+2}, v{vN}')
        a(f'v_mov_b32 v{GT+4*h+3}, v{vN+1}')
    a(f's_lshl_b32 s7, s{sMAT}, 2')
    a(f's_add_u32 s7, s7, s{sKQ}')
    a('s_mul_i32 s7, s7, 3584')
    a(f's_lshl_b32 s8, s{sFB}, 7')
    a('s_add_u32 s7, s7, s8')
    a(f's_lshl_b32 s7, s7, {3 if cfg.prepack else 4}')
    a(f's_add_u32 s7, s7, {WS_PRE}')
    a(f'v_lshlrev_b32 v{vT2}, 3, v0')
    def onehot_mfma(wbase, xd, n, later=None):
        issued = cfg.lat0
        for t in range(n):
            b = BFm + 4 * (t & 1)
            for jd in range(4):
                a(f'v_and_b32 v{b+jd}, v{MK+jd}, v{xd+t}')
            if later is not None:
                a(f's_waitcnt vmcnt({n - 1 - t + issued})')
                if t == n - 1: ts(5)
            cin = '0' if t == 0 else V(ACC, 4)
            a(f'v_mfma_f32_16x16x32_bf16 {V(ACC,4)}, {V(wbase+4*t,4)}, {V(b,4)}, {cin}')
            if later and t < n - 1 and t >= cfg.lstart:
                later.pop(0)(); issued += 1
    onehot_mfma(GW, XD, 16, later)
    a(f's_cmp_ge_u32 s{sG}, 224')
    a('s_cbranch_scc1 L_m_noG')
    ts(13)
    for jj in range(4):
        a(f'ds_write_b32 v{vRGa}, v{ACC+jj} offset:{L_RG+64*jj}')
    def red4(base):
        for h in range(2):
            for sl in range(4):
                a(f'ds_read_b64 {V(X+8*h+2*sl,2)}, v{vT2} offset:{base+512*h+1024*sl}')
        a('s_waitcnt lgkmcnt(0)')
        for h in range(2):
            add2( X + 8 * h, X + 8 * h, X + 8 * h + 2)
            add2( X + 8 * h + 4, X + 8 * h + 4, X + 8 * h + 6)
        for h in range(2):
            add2( GT + 4 * h, X + 8 * h, X + 8 * h + 4)
    assert cfg.prepack
    a('s_mov_b64 exec, 1')
    a(f'ds_add_rtn_u32 v{R_+2}, v{vZ}, v{vONE} offset:{4*C_G}')
    a('s_mov_b64 exec, -1')
    for sl in range(4):
        a(f'ds_read_b128 {V(X+4*sl,4)}, v{vQ} offset:{L_RG+1024*sl}')
    a('s_waitcnt lgkmcnt(0)')
    ts(14)
    a(f'v_readfirstlane_b32 s{sLAST}, v{R_+2}')
    for h in (0, 2):
        add2( X + h, X + h, X + 4 + h)
        add2( X + 8 + h, X + 8 + h, X + 12 + h)
    a(f's_cmp_eq_u32 s{sLAST}, 3')
    a('s_cbranch_scc0 L_m_gwait')
    for h in (0, 2):
        add2( X + h, X + h, X + 8 + h)
    a(f'v_cvt_pk_bf16_f32 v{GT}, v{X}, v{X+1}')
    a(f'v_cvt_pk_bf16_f32 v{GT+1}, v{X+2}, v{X+3}')
    a(f'buffer_store_dwordx4 {V(GT,4)}, v{vQ}, {S(WS_)}, s7 offen sc1')
    lds_inc(C_G)
    a.label('L_m_gwait')
    if cfg.lowmid: a('s_setprio 0')
    ts(6)
    if cfg.dly == 5:
        a('s_memrealtime s[100:101]')
        a('s_waitcnt lgkmcnt(0)')
        a('s_add_u32 s99, s100, 150')
        a.label('L_dly')
        a('s_sleep 1')
        a('s_memrealtime s[100:101]')
        a('s_waitcnt lgkmcnt(0)')
        a('s_sub_u32 s100, s100, s99')
        a('s_cmp_lt_i32 s100, 0')
        a('s_cbranch_scc1 L_dly')
    first, rest = later[:cfg.lpre], later[cfg.lpre:]
    for f in first: f()
    if cfg.gpub: lds_wait(C_G, 5, vT3, sCNT)
    a('s_branch L_m_rest')
    a.label('L_m_noG')
    if cfg.lowmid: a('s_setprio 0')
    for f in first: f()
    a.label('L_m_rest')
    later = rest
    if cfg.lsleep: a(f's_sleep {cfg.lsleep}')
    for f in later: f()
    if cfg.pearly:
        if cfg.pearly > 1: a(f's_sleep {cfg.pearly}')
        for kq in range(4):
            a(f'buffer_load_dwordx4 {V(X+4*kq,4)}, v{vPRa}, {S(WS_)}, s{80+kq} offen sc1')
    a('s_waitcnt vmcnt(%d)' % ((0 if cfg.order else (1 if cfg.dnpre else 8)) + (4 if cfg.pearly else 0)))
    a(f's_mov_b32 s{sCNT}, 0')
    a.label('L_m_stat')
    win_check([ST + 4 * i + 2 for i in range(4)])
    a('s_cbranch_scc1 L_m_stat_ok')
    a('s_sleep 4')
    for i in range(4):
        a(f'buffer_load_dwordx4 {V(ST+4*i,4)}, v{vSA}, {S(WS_)}, s15 offen{off(16*i)} sc1')
    a(f's_add_u32 s{sCNT}, s{sCNT}, 1')
    a('s_waitcnt vmcnt(0)')
    a(f's_cmp_lt_u32 s{sCNT}, {BIG}')
    a('s_cbranch_scc1 L_m_stat')
    a.label('L_m_stat_ok')
    a(f's_mul_i32 s10, s3, {XTW}')
    a(f'v_add_u32 v{vT3}, s10, v{vQ}')
    for i in range(4):
        a(f'ds_write_b128 v{vT3}, {V(QT+4*i,4)} offset:{L_XT+1024*i}')
    a(f'v_add_u32 v{vT3}, s10, v{vT2}')
    for i in range(4):
        a(f'ds_write_b64 v{vT3}, {V(ST+4*i,2)} offset:{L_XT+4096+512*i}')
    a('s_lshl_b32 s10, s3, 2')
    a(f'v_mov_b32 v{vT3}, s10')
    lds_inc(C_XT, vT3)
    ts(7)
    lds_wait(C_MODE, 1, vT3, sCNT)
    a(f'v_readfirstlane_b32 s14, v{vT3}')
    if not cfg.pearly: a(f's_waitcnt vmcnt({cfg.prewait})')
    if cfg.pre0: a(f's_sleep {cfg.pre0}')
    a(f's_mov_b32 s{sCNT}, 0')
    if cfg.dly == 2:
        a('s_memrealtime s[100:101]')
        a('s_waitcnt lgkmcnt(0)')
        a('s_add_u32 s99, s100, 150')
        a.label('L_dly')
        a('s_sleep 1')
        a('s_memrealtime s[100:101]')
        a('s_waitcnt lgkmcnt(0)')
        a('s_sub_u32 s100, s100, s99')
        a('s_cmp_lt_i32 s100, 0')
        a('s_cbranch_scc1 L_dly')
    PM = [(92, 93), (94, 95), (96, 97), (98, 99)]
    for lo, hi in PM: a(f's_mov_b64 s[{lo}:{hi}], -1')
    if cfg.pearly: a('s_branch L_m_pre1')
    a.label('L_m_pre')
    for kq in range(4):
        a(f's_mov_b64 exec, s[{PM[kq][0]}:{PM[kq][1]}]')
        a(f's_cbranch_execz L_m_pre_s{kq}')
        a(f'buffer_load_dwordx4 {V(X+4*kq,4)}, v{vPRa}, {S(WS_)}, s{80+kq} offen sc1')
        a.label(f'L_m_pre_s{kq}')
    a('s_mov_b64 exec, -1')
    a.label('L_m_pre1')
    a('s_waitcnt vmcnt(0)')
    for kq in range(4):
        a(f'v_cmp_ne_u64 s[{PM[kq][0]}:{PM[kq][1]}], {V(X+4*kq+2,2)}, {V(vN,2)}')
    a('s_or_b64 s[10:11], s[92:93], s[94:95]')
    a('s_or_b64 s[10:11], s[10:11], s[96:97]')
    a('s_or_b64 s[10:11], s[10:11], s[98:99]')
    a('s_cbranch_scc0 L_m_pre_ok')
    a(f's_add_u32 s{sCNT}, s{sCNT}, 1')
    a(f's_sleep {cfg.presleep}')
    a(f's_cmp_lt_u32 s{sCNT}, {BIG}')
    a('s_cbranch_scc1 L_m_pre')
    a.label('L_m_pre_ok')
    if cfg.lowmid: a(f's_setprio {cfg.mprio}')
    ts(8)
    if cfg.ts: a(f'v_writelane_b32 v{VTS}, s{sCNT}, 31')
    if cfg.prepack:
        a('v_cmp_eq_u32 vcc, 1, v246')
        for kq in range(4):
            a(f'v_cndmask_b32 v{X+4*kq+2}, v{X+4*kq}, v{X+4*kq+1}, vcc')
        for kq in range(4):
            unpack(X + 4 * kq, X + 4 * kq + 1, X + 4 * kq + 2)
    add2( X, X, X + 4)
    add2( X + 8, X + 8, X + 12)
    add2( X, X, X + 8)
    round2(X, X + 4)
    for tok in range(2): a(f'v_mul_f32 v{X+4+tok}, 0xbfb8aa3b, v{X+tok}')
    for tok in range(2): a(f'v_exp_f32 v{X+4+tok}, v{X+4+tok}')
    for tok in range(2): a(f'v_add_f32 v{X+4+tok}, 1.0, v{X+4+tok}')
    for tok in range(2): a(f'v_rcp_f32 v{X+4+tok}, v{X+4+tok}')
    for tok in range(2): a(f'v_mul_f32 v{X+4+tok}, v{X+4+tok}, v{X+tok}')
    round2(X + 4, X + 6)
    for tok in range(2):
        a(f'v_mul_f32_dpp v{X+8+tok}, v{X+tok}, v{X+4+tok} quad_perm:[1,0,3,2] row_mask:0xf bank_mask:0xf')
    a('s_mov_b32 s8, 0x55555555')
    a('s_mov_b32 s9, 0x55555555')
    for tok in range(2):
        a(f'v_cvt_pk_bf16_f32 v{X+8+tok}, v{X+8+tok}, v{X+8+tok}')
    a('s_mov_b64 exec, s[8:9]')
    a(f'ds_write_b32 v{vHw}, v{X+8} offset:{L_H}')
    a(f'ds_write_b32 v{vHw}, v{X+9} offset:{L_H+128}')
    a('s_mov_b64 exec, -1')
    a(f'ds_read_b128 {V(XD,4)}, v{vHr} offset:{L_H}')
    a(f'ds_read_b128 {V(XD+4,4)}, v{vHr} offset:{L_H+16}')
    a('s_waitcnt lgkmcnt(0)')
    onehot_mfma(DW, XD, 7)
    for jj in range(4):
        a(f'ds_write_b32 v{vRDa}, v{ACC+jj} offset:{L_RD+32*jj}')
    lds_ticket(C_DN, R_ + 2, sLAST)
    a(f's_cmp_eq_u32 s{sLAST}, 3')
    a('s_cbranch_scc0 L_m_noDpub')
    red4(L_RD)
    a('s_cmp_eq_u32 s14, 2')
    a('s_cbranch_scc0 L_m_dpslow')
    for tok in range(2):
        a(f'buffer_store_dwordx4 {V(GT+4*tok,4)}, v{vQ}, {S(WS_)}, s{12+tok} offen')
    a('s_branch L_m_noDpub')
    a.label('L_m_dpslow')
    for tok in range(2):
        a(f'buffer_store_dwordx4 {V(GT+4*tok,4)}, v{vQ}, {S(WS_)}, s{12+tok} offen sc1')
    a.label('L_m_noDpub')
    ts(9)
    DM = [(s, s + 1) for s in (44, 46, 48, 50, 52, 54, 56, 58)]
    for tok in range(2):
        sk = sI0 + tok
        a(f's_and_b32 s15, s{sk}, 0x7ff')
        a('s_sub_u32 s15, 2047, s15')
        a('s_lshr_b32 s7, s15, 6')
        a('s_cmp_eq_u32 s7, s5')
        a(f's_cbranch_scc0 L_m_upd_skip{tok}')
        a('s_lshl_b32 s7, s4, 16')
        a(f's_add_u32 s7, s7, {WS_DP + 32768*tok}')
        a('s_lshl_b32 s8, s3, 8')
        a('s_add_u32 s7, s7, s8')
        a('s_add_u32 s8, s7, 4096')
        a(f'v_lshlrev_b32 v{vT3}, 13, v{vG}')
        a(f'v_lshl_add_u32 v{vT3}, v{vM}, 4, v{vT3}')
        for lo, hi in DM: a(f's_mov_b64 s[{lo}:{hi}], -1')
        a(f's_and_b32 s9, s{sk}, 0xffff0000')
        a('s_ashr_i32 s10, s9, 31')
        a('s_not_b32 s10, s10')
        a('s_or_b32 s10, s10, 0x80000000')
        a('s_xor_b32 s9, s9, s10')
        a('s_and_b32 s9, s9, 0xffff0000')
        a(f'v_mov_b32 v{R_}, s9')
        a(f'v_mul_f32 v{R_}, 0xbfb8aa3b, v{R_}')
        a(f'v_exp_f32 v{R_}, v{R_}')
        a(f'v_add_f32 v{R_}, 1.0, v{R_}')
        a(f'v_rcp_f32 v{R_}, v{R_}')
        a(f'v_cvt_pk_bf16_f32 v{R_}, v{R_}, v{R_}')
        a(f'v_and_b32 v{R_}, 0xffff0000, v{R_}')
        a('s_bfe_u32 s9, s15, 0x10005')
        a('s_lshl_b32 s9, s9, 1')
        a('s_lshr_b32 s10, s3, 1')
        a('s_add_u32 s9, s9, s10')
        a('s_lshl_b32 s10, s9, 2')
        a(f'v_mov_b32 v{R_+1}, s10')
        a(f's_mul_i32 s9, s9, {TABW}')
        a('s_and_b32 s10, s15, 31')
        a('s_lshl_b32 s10, s10, 8')
        a('s_add_u32 s9, s9, s10')
        a('s_and_b32 s10, s3, 1')
        a('s_lshl_b32 s10, s10, 7')
        a('s_add_u32 s9, s9, s10')
        a(f's_add_u32 s9, s9, {L_TAB}')
        a(f'v_lshlrev_b32 v{R_+4}, 3, v{vM}')
        a(f'v_add_u32 v{R_+4}, s9, v{R_+4}')
        a('s_lshl_b32 s15, s15, 11')
        a('s_lshl_b32 s9, s4, 8')
        a('s_add_u32 s15, s15, s9')
        a('s_lshl_b32 s9, s3, 6')
        a('s_add_u32 s15, s15, s9')
        a(f'v_lshlrev_b32 v{R_+5}, 2, v{vM}')
        a(f's_mov_b32 s{sCNT}, 0')
        a.label(f'L_m_dp{tok}')
        for i in range(8):
            a(f's_mov_b64 exec, s[{DM[i][0]}:{DM[i][1]}]')
            a(f's_cbranch_execz L_m_dp{tok}_s{i}')
            a(f'buffer_load_dwordx4 {V(X+4*i,4)}, v{vT3}, {S(WS_)}, s{7+(i>>2)} offen{off(1024*(i&3))} sc1')
            a.label(f'L_m_dp{tok}_s{i}')
        a('s_mov_b64 exec, -1')
        a('s_waitcnt vmcnt(0)')
        for i in range(8):
            a(f'v_cmp_ne_u64 s[{DM[i][0]}:{DM[i][1]}], {V(X+4*i+2,2)}, {V(vN,2)}')
        a(f's_or_b64 s[10:11], s[{DM[0][0]}:{DM[0][1]}], s[{DM[1][0]}:{DM[1][1]}]')
        for i in range(2, 8):
            a(f's_or_b64 s[10:11], s[10:11], s[{DM[i][0]}:{DM[i][1]}]')
        a(f's_cbranch_scc0 L_m_dp_ok{tok}')
        if cfg.dpsleep: a(f's_sleep {cfg.dpsleep}')
        a(f's_add_u32 s{sCNT}, s{sCNT}, 1')
        a(f's_cmp_lt_u32 s{sCNT}, {BIG*4}')
        a(f's_cbranch_scc1 L_m_dp{tok}')
        a.label(f'L_m_dp_ok{tok}')
        ts(12)
        for i in range(0, 8, 2):
            add2( X + 4 * i, X + 4 * i, X + 4 * i + 4)
        add2( X, X, X + 8)
        add2( X + 16, X + 16, X + 24)
        add2( X, X, X + 16)
        cross_rows('v_add_f32', [X, X + 1], [X + 4, X + 5])
        round2(X, X + 4)
        a(f'v_mul_f32 v{X}, v{X}, v{R_}')
        a(f'v_mul_f32 v{X+1}, v{X+1}, v{R_}')
        round2(X, X + 4)
        lds_wait(C_ST, 1, R_ + 2, sCNT, vaddr=R_ + 1)
        a(f'ds_read_b64 {V(X+4,2)}, v{R_+4}')
        a('s_waitcnt lgkmcnt(0)')
        add2( X, X, X + 4)
        a(f'v_cvt_pk_bf16_f32 v{X}, v{X}, v{X+1}')
        a('s_mov_b64 exec, 0xffff')
        a(f'buffer_store_dword v{X}, v{R_+5}, {S(OUTM_)}, s15 offen')
        a('s_mov_b64 exec, -1')
        a.label(f'L_m_upd_skip{tok}')
    ts(10)
    ts_store(WS_, 4)
    a.label('L_end')
    a('s_endpgm')

    a.hist = []
    partM = a.lines; a.lines = []
    a.label('L_C')
    K_, V_, SH_, HK_, DD_, OUT_, WS_, DBG_, SCR_ = range(44, 80, 4)
    sXCC, sCNT, sMODE, sCH, sCL, sHC2, sFET = 92, 93, 94, 95, 96, 97, 98
    vS, vAa, vBa, vY, vF, vU, vT2, vT3 = 3, 4, 5, 6, 7, 8, 11, 12
    vN = 14
    KR, VR, SHR, HS = 16, 38, 56, 64
    vFL = 54
    vD = 88; vPA = 89; vFA = 90; vTa = 91; vP = 92
    W_ = 96; KF = 112; KVP = 156; TMP = 172
    PT = 244
    srd(a, K_, P_K, 0x400000)
    if cfg.qfirst: a('s_barrier')
    a(f'buffer_load_dwordx2 {V(KR,2)}, v11, {S(K_)}, 0 offen{NT}')
    a(f'buffer_load_dwordx2 {V(KR+2,2)}, v11, {S(K_)}, 0 offen offset:2048{NT}')
    a(f'buffer_load_dwordx2 {V(KR+4,2)}, v12, {S(K_)}, 0 offen{NT}')
    for r in range(8):
        so, io = rowoff[r]
        a(f'buffer_load_dwordx2 {V(KR+6+2*r,2)}, v{vC}, {S(K_)}, {so} offen{off(io)}{NT}')
    srd(a, SH_, P_SH, 8192)
    a('s_lshl_b32 s7, s4, 10')
    a(f's_lshl_b32 s8, s{sHC}, 9')
    a('s_add_u32 s7, s7, s8')
    a(f'v_lshlrev_b32 v{vT2}, 5, v{vT0}')
    a(f'buffer_load_dwordx4 {V(SHR,4)}, v{vT2}, {S(SH_)}, s7 offen')
    a(f'buffer_load_dwordx4 {V(SHR+4,4)}, v{vT2}, {S(SH_)}, s7 offen offset:16')
    srd(a, V_, P_V, 0x400000)
    for r in range(8):
        so, io = rowoff[r]
        a(f'buffer_load_dwordx2 {V(VR+2*r,2)}, v{vC}, {S(V_)}, {so} offen{off(io)}{NT}')
    srd(a, OUT_, P_OUT, 0x400000)
    a(f'v_lshlrev_b32 v{vTa}, 4, v0')
    a(f'v_lshlrev_b32 v{vS}, 12, v{vT0}')
    a(f'v_lshl_add_u32 v{vS}, v{vT1}, 4, v{vS}')
    a(f'v_add_u32 v{vS}, s6, v{vS}')
    soff = [0, 64, 2048, 2112]
    a(f'v_lshl_add_u32 v{vT2}, v{vT1}, 4, v{vS}')
    if not cfg.pt: a(f'v_mov_b32 v{vT2}, 0x7ff00000')
    a(f'buffer_load_dword v{PT}, v{vT2}, {S(OUT_)}, 0 offen{cfg.polpt}')
    a(f'buffer_load_dword v{PT+1}, v{vT2}, {S(OUT_)}, 0 offen offset:2048{cfg.polpt}')
    srd(a, HK_, P_HK, 0x400000)
    srd(a, DD_, P_D, 2048)
    a(f's_lshl_b32 s{sCH}, s4, 7')
    a('s_lshl_b32 s7, s5, 2')
    a(f's_add_u32 s{sCH}, s{sCH}, s7')
    a(f's_add_u32 s{sCH}, s{sCH}, s3')
    def hs_loads():
        a(f's_lshl_b32 s12, s{sCH}, 12')
        a(f's_lshl_b32 s13, s{sCH}, 1')
        a(f'buffer_load_ushort v{vD}, v{vZ}, {S(DD_)}, s13 offen')
        for it in range(4):
            a(f'buffer_load_dwordx4 {V(HS+6*it,4)}, v{vTa}, {S(HK_)}, s12 offen{off(1024*it)}{cfg.polh}')
            a(f'buffer_load_dwordx2 {V(HS+6*it+4,2)}, v{vTa}, {S(HK_)}, s12 offen offset:{1024*it+16}{cfg.polh}')
    nh = 0
    ts(0)
    srd(a, WS_, P_WS, 0x10000000)
    srd(a, DBG_, P_DBG, 256)
    srd(a, SCR_, P_OUT, 0x400000)
    a(f's_mov_b32 s{s1m}, 0x100000')
    a(f's_mov_b32 s{s2m}, 0x200000')
    a(f's_mov_b32 s{s3m}, 0x300000')
    a(f's_getreg_b32 s{sXCC}, hwreg(HW_REG_XCC_ID, 0, 4)')
    a(f's_lshr_b32 s{sHC2}, s5, 4')
    a('s_and_b32 s7, s5, 15')
    a('s_lshl_b32 s7, s7, 2')
    a(f's_add_u32 s{sCL}, s7, s3')
    a(f's_lshr_b32 s9, s{sCL}, 1')
    a('s_lshl_b32 s9, s9, 11')
    a('s_lshl_b32 s7, s4, 8')
    a('s_add_u32 s9, s9, s7')
    a(f's_lshl_b32 s7, s{sHC2}, 7')
    a('s_add_u32 s9, s9, s7')
    a(f's_and_b32 s7, s{sCL}, 1')
    a('s_lshl_b32 s7, s7, 6')
    a('s_add_u32 s9, s9, s7')
    a(f'v_lshrrev_b32 v{vF}, 2, v0')
    a(f'v_lshlrev_b32 v{vF}, 16, v{vF}')
    a(f'v_and_b32 v{vT2}, 3, v0')
    a(f'v_lshl_add_u32 v{vF}, v{vT2}, 4, v{vF}')
    a(f'v_add_u32 v{vF}, s9, v{vF}')
    a(f'v_and_b32 v{vT2}, 1, v{vT1}')
    a(f'v_lshlrev_b32 v{vT2}, 3, v{vT2}')
    a(f'v_lshrrev_b32 v{vT3}, 1, v{vT0}')
    a(f'v_add_u32 v{vT2}, v{vT2}, v{vT3}')
    a(f'v_lshlrev_b32 v{vY}, 16, v{vT2}')
    a(f'v_and_b32 v{vT2}, 1, v{vT0}')
    a(f'v_lshlrev_b32 v{vT2}, 1, v{vT2}')
    a(f'v_lshrrev_b32 v{vT3}, 1, v{vT1}')
    a(f'v_add_u32 v{vT2}, v{vT2}, v{vT3}')
    a(f'v_lshl_add_u32 v{vY}, v{vT2}, 4, v{vY}')
    a(f'v_add_u32 v{vY}, s9, v{vY}')
    a(f's_mul_i32 s10, s3, {TABW}')
    a(f's_add_u32 s10, s10, {L_TAB}')
    a(f's_mul_i32 s11, s3, {USTR}')
    a(f's_add_u32 s11, s11, {L_U}')
    a('s_add_u32 s7, s11, 1008')
    a(f'v_sub_u32 v{vU}, s7, v{vTa}')
    a(f'v_lshlrev_b32 v{vT2}, 5, v{vT0}')
    a('s_add_u32 s7, s11, 480')
    a(f'v_sub_u32 v{vBa}, s7, v{vT2}')
    a(f'v_lshl_add_u32 v{vBa}, v{vT1}, 4, v{vBa}')
    a(f'v_add_u32 v{vT2}, 1, v{vT0}')
    a(f'v_and_b32 v{vT3}, 3, v{vT2}')
    a(f'v_mul_u32_u24 v{vAa}, {TSTR}, v{vT3}')
    a(f'v_and_b32 v{vT2}, 0x1c, v{vT2}')
    a(f'v_lshl_add_u32 v{vAa}, v{vT2}, 1, v{vAa}')
    a(f'v_lshl_add_u32 v{vAa}, v{vT1}, 4, v{vAa}')
    a(f'v_add_u32 v{vAa}, s10, v{vAa}')
    a('s_lshl_b32 s7, s4, 1')
    a(f's_add_u32 s8, s7, s{sHC}')
    a('s_lshl_b32 s8, s8, 6')
    a('s_lshl_b32 s14, s5, 1')
    a('s_add_u32 s8, s8, s14')
    a(f's_add_u32 s8, s8, s{sHR}')
    a('s_lshl_b32 s8, s8, 3')
    a(f'v_mov_b32 v{vFA}, s8')
    a(f's_add_u32 s8, s7, s{sHC2}')
    a('s_lshl_b32 s8, s8, 9')
    a(f'v_lshlrev_b32 v{vPA}, 3, v0')
    a(f'v_add_u32 v{vPA}, s8, v{vPA}')
    for i in range(4): a(f'v_mov_b32 v{TMP+i}, 0')
    a(f'v_lshlrev_b32 v{vT2}, 3, v0')
    a(f'v_add_u32 v{vT2}, s11, v{vT2}')
    a(f'ds_write_b64 v{vT2}, {V(TMP,2)} offset:4096')
    a(f'v_bfe_u32 v{vT2}, v0, 1, 2')
    a(f'v_mul_u32_u24 v{vT2}, {TSTR}, v{vT2}')
    a(f'v_and_b32 v{vT3}, 1, v0')
    a(f'v_lshl_add_u32 v{vT2}, v{vT3}, 4, v{vT2}')
    a(f'v_add_u32 v{vT2}, s10, v{vT2}')
    a(f'ds_write_b128 v{vT2}, {V(TMP,4)}')
    vTw = 95
    a(f'v_add_u32 v{vTw}, s10, v{vTa}')
    a(f's_mov_b32 s7, {WS_FA}')
    a(f's_mov_b32 s8, {WS_FB}')
    a(f's_mov_b32 s{sMODE}, 1')
    a(f's_mov_b32 s{sFET}, 0')
    if cfg.prio: a(f's_setprio {cfg.prio}')
    a(f's_waitcnt vmcnt(10)')
    if cfg.hsmode == 3:
        hs_loads(); nh = 9
    a(f'buffer_load_dwordx2 {V(vN,2)}, v{vZ}, {S(DBG_)}, 0 offen sc1')
    if cfg.hsmode == 3 and cfg.wearly: lds_inc(C_TRIG)
    ts(1)
    for ch in range(4):
        unpack(W_ + 0 * 4 + ch, W_ + 1 * 4 + ch, SHR + 2 * ch)
        unpack(W_ + 2 * 4 + ch, W_ + 3 * 4 + ch, SHR + 2 * ch + 1)
    for r in range(11):
        unpack(KF + 4 * r, KF + 4 * r + 1, KR + 2 * r)
        unpack(KF + 4 * r + 2, KF + 4 * r + 3, KR + 2 * r + 1)
    KS = TMP; RT = 204
    for r in range(8):
        for h in (0, 2):
            pk('v_pk_mul_f32', KS + 4 * r + h, KF + 4 * r + h, W_ + 12 + h)
        if cfg.exact_ks == 2:
            for h in (0, 2): round2(KS + 4 * r + h, RT + h // 2)
        for t in (2, 1, 0):
            for h in (0, 2):
                if cfg.exact_ks == 2:
                    pk('v_pk_mul_f32', RT + 2 + h, KF + 4 * (r + 3 - t) + h, W_ + 4 * t + h)
                    round2(RT + 2 + h, RT + h // 2)
                    pk('v_pk_add_f32', KS + 4 * r + h, KS + 4 * r + h, RT + 2 + h)
                    round2(KS + 4 * r + h, RT + h // 2)
                else:
                    pk('v_pk_fma_f32', KS + 4 * r + h, KF + 4 * (r + 3 - t) + h, W_ + 4 * t + h, KS + 4 * r + h)
        if cfg.exact_ks == 1:
            for h in (0, 2): round2(KS + 4 * r + h, RT + h // 2)
    a(f's_waitcnt vmcnt({3+nh})')
    ts(2)
    VF = KF
    for r in range(8):
        unpack(VF + 4 * r, VF + 4 * r + 1, VR + 2 * r)
        unpack(VF + 4 * r + 2, VF + 4 * r + 3, VR + 2 * r + 1)
    for r in range(8):
        for h in (0, 2):
            pk('v_pk_mul_f32', KS + 4 * r + h, KS + 4 * r + h, VF + 4 * r + h)
    for ch in range(4):
        for rp in range(4):
            a(f'v_cvt_pk_bf16_f32 v{KVP+4*ch+3-rp}, v{KS+4*(2*rp+1)+ch}, v{KS+4*(2*rp)+ch}')
        a(f'buffer_store_dwordx4 {V(KVP+4*ch,4)}, v{vS}, {S(OUT_)}, 0 offen{off(soff[ch])}')
    ts(3)
    ACCB = 96; AF = 128; BF = 176; BALT = 208; AD = 216; FET = 220
    TB = 96
    mo = ['0', f's{s1m}', f's{s2m}', f's{s3m}']
    def table(it):
        d = HS + 6 * it
        t1, t2, t3 = TB, TB + 4, TB + 8
        if it & 1: t1, t2, t3 = TB + 12, TB + 16, TB + 20
        a(f'ds_write_b128 v{vTw}, {V(d,4)} offset:{32+1024*it}')
        for jj in range(4): a(f'v_alignbyte_b32 v{t1+jj}, v{d+jj+1}, v{d+jj}, 2')
        a(f'ds_write_b128 v{vTw}, {V(t1,4)} offset:{32+1024*it+TSTR}')
        for jj in range(4): a(f'v_mov_b32 v{t2+jj}, v{d+jj+1}')
        a(f'ds_write_b128 v{vTw}, {V(t2,4)} offset:{32+1024*it+2*TSTR}')
        for jj in range(4): a(f'v_alignbyte_b32 v{t3+jj}, v{d+jj+2}, v{d+jj+1}, 2')
        a(f'ds_write_b128 v{vTw}, {V(t3,4)} offset:{32+1024*it+3*TSTR}')
        if it == 0:
            a(f'v_lshlrev_b32 v{vT3}, 16, v{d}')
            a('s_mov_b64 exec, 1')
            a(f'ds_write_b32 v{vTw}, v{vT3} offset:{TSTR+28}')
            a(f'ds_write_b32 v{vTw}, v{d} offset:{2*TSTR+28}')
            a(f'ds_write_b32 v{vTw}, v{vT3} offset:{3*TSTR+24}')
            a(f'ds_write_b32 v{vTw}, v{t1} offset:{3*TSTR+28}')
            a('s_mov_b64 exec, -1')
    def adfrag():
        a(f'v_lshlrev_b32 v{vT2}, 3, v{vT1}')
        a(f'v_add_u32 v{vT2}, v{vT2}, v{vT0}')
        a(f'v_sub_u32 v{vT2}, 15, v{vT2}')
        a(f'v_and_b32 v{vT3}, 1, v{vT2}')
        a(f'v_lshlrev_b32 v{vT3}, 4, v{vT3}')
        a(f'v_lshlrev_b32 v{vT3}, v{vT3}, v{vD}')
        a(f'v_ashrrev_i32 v{vT2}, 1, v{vT2}')
        for jd in range(4):
            a(f'v_cmp_eq_u32 vcc, {jd}, v{vT2}')
            a(f'v_cndmask_b32 v{AD+jd}, 0, v{vT3}, vcc')
    def fetch():
        for it in range(4):
            a(f'buffer_load_dwordx4 {V(FET+4*it,4)}, v{vF}, {S(SCR_)}, {mo[it]} offen sc1')
        lds_inc(C_GATE)
    def poll_issue():
        a(f'buffer_load_dwordx2 {V(vP,2)}, v{vPA}, {S(WS_)}, s7 offen sc1')
    def poll_step(lbl):
        if cfg.force_slow: return
        a(f's_cmp_eq_u32 s{sFET}, 1')
        a(f's_cbranch_scc1 {lbl}')
        a('s_waitcnt vmcnt(0)')
        a(f'v_cmp_eq_u64 vcc, {V(vP,2)}, {V(vFL,2)}')
        a('s_cmp_eq_u64 vcc, exec')
        a(f's_cbranch_scc1 {lbl}_f')
        poll_issue()
        a(f's_branch {lbl}')
        a.label(f'{lbl}_f')
        fetch()
        a(f's_mov_b32 s{sFET}, 1')
        a.label(lbl)
    if cfg.hsmode == 3:
        a('s_waitcnt vmcnt(11)')
        adfrag()
        table(0)
        a('s_waitcnt vmcnt(9)')
        table(1)
    if cfg.hsmode == 2 and cfg.hse:
        lds_inc(C_PUB)
        lds_wait(C_PUB, 4, vT3, sCNT)
        hs_loads()
        lds_inc(C_TRIG)
        a('s_waitcnt vmcnt(9)')
    else:
        a('s_waitcnt vmcnt(0)')
    a(f's_mov_b32 s{sCNT}, 0')
    a.label('L_c_nonce')
    a(f'v_cmp_ne_u64 vcc, 0, {V(vN,2)}')
    a('s_cbranch_vccnz L_c_nonce_ok')
    a(f'buffer_load_dwordx2 {V(vN,2)}, v{vZ}, {S(DBG_)}, 0 offen sc1')
    a(f's_add_u32 s{sCNT}, s{sCNT}, 1')
    a('s_sleep 2')
    a('s_waitcnt vmcnt(0)')
    a(f's_cmp_lt_u32 s{sCNT}, {BIG}')
    a('s_cbranch_scc1 L_c_nonce')
    a.label('L_c_nonce_ok')
    a(f'v_or_b32 v{vFL}, s{sXCC}, v{vN}')
    a(f'v_mov_b32 v{vFL+1}, v{vN+1}')
    a('s_mov_b64 exec, 1')
    a(f'buffer_store_dwordx2 {V(vFL,2)}, v{vFA}, {S(WS_)}, s7 offen')
    a('s_mov_b64 exec, -1')
    ts(4)
    if cfg.hsmode == 3:
        table(2)
        if not cfg.force_slow: poll_issue()
        table(3)
    else:
        if not cfg.hse:
            lds_inc(C_PUB)
            lds_wait(C_PUB, 4, vT3, sCNT)
            hs_loads()
            lds_inc(C_TRIG)
        if cfg.hse:
            fs = 0 if cfg.force_slow else 1
            a('s_waitcnt vmcnt(7)')
            ts(5)
            adfrag()
            table(0)
            a('s_waitcnt vmcnt(5)')
            if fs and cfg.pollat == 1: poll_issue()
            table(1)
            a(f's_waitcnt vmcnt({3 + (fs if cfg.pollat == 1 else 0)})')
            if fs and cfg.pollat == 2: poll_issue()
            table(2)
            a(f's_waitcnt vmcnt({fs})')
            poll_step('L_c_ps2')
            table(3)
        elif cfg.tord == 0:
            a('s_waitcnt vmcnt(2)')
            if not cfg.force_slow: poll_issue()
            a('s_waitcnt vmcnt(%d)' % (0 if cfg.force_slow else 1))
            ts(5)
            poll_step('L_c_ps0')
            adfrag()
            table(0)
            poll_step('L_c_ps1')
            table(1)
            poll_step('L_c_ps2')
            table(2)
            table(3)
        else:
            fs = 0 if cfg.force_slow else 1
            a('s_waitcnt vmcnt(6)')
            if fs: poll_issue()
            ts(5)
            adfrag()
            table(0)
            a(f's_waitcnt vmcnt({4+fs})')
            table(1)
            a(f's_waitcnt vmcnt({2+fs})')
            if cfg.tord == 2: poll_step('L_c_ps1')
            table(2)
            if cfg.tord == 1: a(f's_waitcnt vmcnt({fs})')
            if cfg.force_slow: a('s_waitcnt vmcnt(0)')
            poll_step('L_c_ps2')
            table(3)
    a(f's_mov_b32 s{sCNT}, 0')
    if cfg.force_slow:
        a('s_branch L_c_slow')
    a(f's_cmp_eq_u32 s{sFET}, 1')
    a('s_cbranch_scc1 L_c_fetched')
    a.label('L_c_poll')
    a('s_waitcnt vmcnt(0)')
    a(f'v_cmp_eq_u64 vcc, {V(vP,2)}, {V(vFL,2)}')
    a('s_cmp_eq_u64 vcc, exec')
    a('s_cbranch_scc1 L_c_fetch')
    poll_issue()
    a(f's_add_u32 s{sCNT}, s{sCNT}, 1')
    a(f's_cmp_lt_u32 s{sCNT}, {cfg.n1}')
    a('s_cbranch_scc1 L_c_poll')
    a('s_branch L_c_slow')
    main_lines = a.lines; a.lines = []; a.hist = []
    a.label('L_c_slow')
    a('s_waitcnt vmcnt(0)')
    srd_off(a, SCR_, P_WS, WS_KB, 0x400000)
    for ch in range(4):
        a(f'buffer_store_dwordx4 {V(KVP+4*ch,4)}, v{vS}, {S(SCR_)}, 0 offen{off(soff[ch])} sc1')
    a('s_waitcnt vmcnt(0)')
    a('s_mov_b64 exec, 1')
    a(f'buffer_store_dwordx2 {V(vFL,2)}, v{vFA}, {S(WS_)}, s8 offen sc1')
    a('s_mov_b64 exec, -1')
    a.label('L_c_poll2')
    a('s_sleep 8')
    a(f'buffer_load_dwordx2 {V(vP,2)}, v{vPA}, {S(WS_)}, s7 offen sc1')
    a(f'buffer_load_dwordx2 {V(PT+2,2)}, v{vPA}, {S(WS_)}, s8 offen sc1')
    a('s_waitcnt vmcnt(0)')
    if not cfg.force_slow:
        a(f'v_cmp_eq_u64 vcc, {V(vP,2)}, {V(vFL,2)}')
        a('s_cmp_eq_u64 vcc, exec')
        a('s_cbranch_scc1 L_c_fast_again')
    a(f'v_cmp_eq_u64 s[12:13], {V(PT+2,2)}, {V(vFL,2)}')
    a(f'v_and_b32 v{PT+2}, -16, v{PT+2}')
    a(f'v_cmp_eq_u64 vcc, {V(PT+2,2)}, {V(vN,2)}')
    a('s_cmp_eq_u64 vcc, exec')
    a('s_cbranch_scc1 L_c_slow_ok')
    a(f's_add_u32 s{sCNT}, s{sCNT}, 1')
    a(f's_cmp_lt_u32 s{sCNT}, {BIG}')
    a('s_cbranch_scc1 L_c_poll2')
    a.label('L_c_slow_ok')
    if cfg.force_slow:
        a(f's_mov_b32 s{sMODE}, 0')
    else:
        a('s_cmp_eq_u64 s[12:13], exec')
        a(f's_cselect_b32 s{sMODE}, 1, 0')
    fetch()
    a('s_waitcnt vmcnt(0)')
    a(f's_cmp_eq_u32 s{sMODE}, 1')
    a('s_cbranch_scc1 L_c_scr_out')
    srd_off(a, SCR_, P_WS, WS_YB, 0x400000)
    a('s_branch L_c_fetched')
    a.label('L_c_scr_out')
    srd(a, SCR_, P_OUT, 0x400000)
    a('s_branch L_c_fetched')
    a.label('L_c_fast_again')
    srd(a, SCR_, P_OUT, 0x400000)
    a('s_branch L_c_fetch')
    slow_lines = a.lines; a.lines = main_lines; a.hist = []
    a.label('L_c_fetch')
    fetch()
    a.label('L_c_fetched')
    a(f's_add_u32 s12, s{sMODE}, 1')
    a(f'v_mov_b32 v{vT3}, s12')
    a(f'ds_write_b32 v{vZ}, v{vT3} offset:{4*C_MODE}')
    ts(6)
    if cfg.ts:
        a(f'v_writelane_b32 v{VTS}, s{sCNT}, 30')
        a(f'v_writelane_b32 v{VTS}, s{sFET}, 31')
    def ldA(cp, extra=0):
        o = 512 * cp + extra
        a(f'ds_read_b64 {V(AF+4*cp,2)}, v{vAa} offset:{o}')
        a(f'ds_read_b64 {V(AF+4*cp+2,2)}, v{vAa} offset:{o+8}')
    def breg(e, par):
        return (BALT + 4 * e) if (e < 2 and par) else BF + 4 * e
    def ldB(e, par, extra=0):
        a(f'ds_read_b128 {V(breg(e,par),4)}, v{vBa} offset:{3584-512*e+extra}')
    for cp in range(7, -1, -1): ldA(cp)
    for it in range(4):
        a(f's_waitcnt vmcnt({3-it})')
        a(f'ds_write_b128 v{vU}, {V(FET+4*it,4)} offset:{3072-1024*it}')
    ts(7)
    if cfg.dly == 1:
        a('s_memrealtime s[100:101]')
        a('s_waitcnt lgkmcnt(0)')
        a('s_add_u32 s99, s100, 150')
        a.label('L_dly')
        a('s_sleep 1')
        a('s_memrealtime s[100:101]')
        a('s_waitcnt lgkmcnt(0)')
        a('s_sub_u32 s100, s100, s99')
        a('s_cmp_lt_i32 s100, 0')
        a('s_cbranch_scc1 L_dly')
    for e in range(8): ldB(e, 0)
    for e in range(8):
        a(f's_waitcnt lgkmcnt({7-e})')
        a(f'v_mfma_f32_16x16x32_bf16 {V(ACCB+4*e,4)}, {V(AD,4)}, {V(BF+4*e,4)}, 0')
    a(f's_mov_b32 s{sCNT}, 0')
    def mf(cp, e, par):
        nt = cp + e
        a(f'v_mfma_f32_16x16x32_bf16 {V(ACCB+4*nt,4)}, {V(AF+4*cp,4)}, {V(breg(e,par),4)}, {V(ACCB+4*nt,4)}')
    if cfg.noconv:
        a('s_sleep 110'); a('s_branch L_conv_end')
    def residue_old(par, nx):
        issued = 0
        for cp in range(7, -1, -1):
            for e in range(0, 8 - cp):
                if e == 7 - cp and e >= 2 and cp >= 1:
                    a(f's_waitcnt lgkmcnt({min((7 - e) + 2 + issued, 15)})')
                if cp == 7 and e == 0: a('s_waitcnt lgkmcnt(8)')
                if cp == 0 and e == 0: a(f's_waitcnt lgkmcnt({min(issued,15)})')
                mf(cp, e, par)
                if cp == 0 and e >= 2:
                    ldB(e, 1 - par, nx); issued += 1
            ldA(cp, nx); issued += 2
            if cp == 4:
                ldB(0, 1 - par, nx); ldB(1, 1 - par, nx); issued += 2
    SEQ = [(cp, e) for cp in range(7, -1, -1) for e in range(8 - cp)]
    GAP = {0: ('A', 0, 0, 0), 1: ('A', 0, 1, 0), 2: ('A', 7, 0, 1), 3: ('A', 7, 1, 1), 4: ('A', 6, 0, 1), 5: ('A', 6, 1, 1),
           6: ('A', 5, 0, 1), 7: ('A', 5, 1, 1), 8: ('B', 0, 0, 1), 10: ('A', 4, 0, 1), 11: ('A', 4, 1, 1), 12: ('B', 1, 0, 1),
           15: ('A', 3, 0, 1), 16: ('A', 3, 1, 1), 21: ('A', 2, 0, 1), 22: ('A', 2, 1, 1), 28: ('A', 1, 0, 1), 29: ('A', 1, 1, 1)}
    for e in range(2, 8): GAP[28 + e] = ('B', e, 0, 1)
    def waits_for(seq, gap):
        ops = []
        res = {}
        for rnd, (sq, gp) in enumerate(((SEQ, GAP), (SEQ, GAP), (seq, gap))):
            guaranteed = getattr(waits_for, 'g', -1) if False else None
            for i, (cp, e) in enumerate(sq):
                need = -1
                for nm in (('A', cp), ('B', e)):
                    idx = [k for k, (n, r) in enumerate(ops) if n == nm and r == rnd]
                    if idx: need = max(need, max(idx))
                if need > waits_for.done:
                    n = len(ops) - 1 - need
                    if rnd == 2: res[i] = min(n, 14)
                    waits_for.done = len(ops) - 1 - min(n, 14)
                if i in gp:
                    k, x, h, rel = gp[i]
                    ops.append(((k, x), rnd + rel))
        return res
    def residue_gen(par, cur, seq, gap, extra=None):
        waits_for.done = -1
        w = waits_for(seq, gap)
        for i, (cp, e) in enumerate(seq):
            if i in w: a(f's_waitcnt lgkmcnt({w[i]})')
            mf(cp, e, par)
            if i in gap:
                k, x, h, rel = gap[i]
                o = cur + 64 * rel
                if k == 'A': a(f'ds_read_b64 {V(AF+4*x+2*h,2)}, v{vAa} offset:{512*x+o+8*h}')
                else: ldB(x, (1 - par) if rel else par, o)
            if extra: extra(i)
    def residue(par, nx):
        if cfg.sched: residue_gen(par, nx - 64, SEQ, GAP)
        else: residue_old(par, nx)
    YP = 16
    a(f's_lshl_b32 s7, s{sCH}, 3')
    a(f's_add_u32 s7, s7, {WS_FY}')
    if cfg.peel: a(f's_sub_u32 s8, 4, s{sMODE}')
    else: a('s_mov_b32 s8, 4')
    a.label('L_conv')
    residue(0, 64)
    residue(1, 128)
    a(f'v_add_u32 v{vAa}, 128, v{vAa}')
    a(f'v_add_u32 v{vBa}, 128, v{vBa}')
    a(f's_add_u32 s{sCNT}, s{sCNT}, 1')
    a(f's_cmp_lt_u32 s{sCNT}, s8')
    a('s_cbranch_scc1 L_conv', noflush=True)
    a.label('L_conv_end')
    def ycvt(nt):
        a(f'v_cvt_pk_bf16_f32 v{YP+2*nt}, v{ACCB+4*nt}, v{ACCB+4*nt+1}')
        a(f'v_cvt_pk_bf16_f32 v{YP+2*nt+1}, v{ACCB+4*nt+2}, v{ACCB+4*nt+3}')
    def yswap(p):
        a(f'v_permlane16_swap_b32 v{YP+4*p}, v{YP+4*p+2}')
        a(f'v_permlane16_swap_b32 v{YP+4*p+1}, v{YP+4*p+3}')
    def ystore(p, sc):
        a(f'buffer_store_dwordx4 {V(YP+4*p,4)}, v{vY}, {S(SCR_)}, {mo[p]} offen{sc}')
    def yflag(sc):
        a('s_mov_b64 exec, 1')
        a('s_waitcnt vmcnt(0)')
        a(f'buffer_store_dwordx2 {V(vN,2)}, v{vZ}, {S(WS_)}, s7 offen{sc}')
        a('s_mov_b64 exec, -1')
    def yplain(sc):
        for nt in range(8): ycvt(nt)
        for p in range(4): yswap(p)
        for p in range(4): ystore(p, sc)
        yflag(sc)
    a(f's_cmp_eq_u32 s{sMODE}, 1')
    a('s_cbranch_scc0 L_c_ysl', noflush=True)
    if cfg.peel:
        residue(0, 64)
        seq = []
        for cp in range(7, 3, -1):
            for e in range(8 - cp): seq.append((cp, e))
        for nt in range(8):
            for cp in range(min(nt, 3), -1, -1): seq.append((cp, nt - cp))
        done_at = {}
        for i, (cp, e) in enumerate(seq): done_at[cp + e] = i
        todo = []
        for p in range(4):
            d0, d1 = done_at[2 * p], done_at[2 * p + 1]
            todo.append((d0 + 5, lambda p=p: ycvt(2 * p)))
            todo.append((d1 + 5, lambda p=p: ycvt(2 * p + 1)))
            todo.append((d1 + 7, lambda p=p: yswap(p)))
            todo.append((d1 + 8, lambda p=p: ystore(p, '')))
        def extra(i):
            while todo and todo[0][0] <= i:
                todo.pop(0)[1]()
        if cfg.sched:
            residue_gen(1, 64, seq, {0: ('A', 0, 0, 0), 1: ('A', 0, 1, 0)}, extra)
        else:
            for i, (cp, e) in enumerate(seq):
                if i == 0: a('s_waitcnt lgkmcnt(8)')
                if (cp, e) == (5, 2): a('s_waitcnt lgkmcnt(7)')
                if (cp, e) == (4, 3): a('s_waitcnt lgkmcnt(6)')
                if i == 10: a('s_waitcnt lgkmcnt(0)')
                mf(cp, e, 1)
                extra(i)
        ts(8)
        for _, f in todo: f()
        yflag('')
    else:
        ts(8)
        yplain('')
    main_lines = a.lines; a.lines = slow_lines; a.hist = []
    a.label('L_c_ysl')
    a('s_nop 7')
    yplain(' sc1')
    a('s_branch L_c_ydone')
    slow_lines = a.lines; a.lines = main_lines; a.hist = []
    a.label('L_c_ydone')
    ts(9)
    XR, XN, Z, YR, FT = 32, 96, 128, 160, 176
    MM, INV = XR + 24, XR + 32
    a('s_lshl_b32 s7, s3, 2')
    a(f'v_mov_b32 v{vT2}, s7')
    lds_wait(C_XT, 1, vT3, sCNT, vaddr=vT2)
    a(f's_mul_i32 s7, s3, {XTW}')
    a(f'v_lshlrev_b32 v{vF}, 3, v0')
    a(f'v_add_u32 v{vT3}, s7, v{vF}')
    for i in range(4):
        a(f'ds_read_b64 {V(XR+16+2*i,2)}, v{vT3} offset:{L_XT+4096+512*i}')
    a(f'v_add_u32 v{vT3}, s7, v{vTa}')
    for i in range(4):
        a(f'ds_read_b128 {V(XR+4*i,4)}, v{vT3} offset:{L_XT+1024*i}')
    a(f'ds_read_b128 {V(FT,4)}, v{vZ} offset:{L_SEL}')
    a('s_lshl_b32 s7, s4, 10')
    a(f's_lshl_b32 s8, s{sHC}, 9')
    a('s_add_u32 s7, s7, s8')
    a(f's_add_u32 s7, s7, {WS_FY}')
    a('s_waitcnt lgkmcnt(0)')
    a(f'v_readfirstlane_b32 s14, v{FT}')
    a(f'v_readfirstlane_b32 s15, v{FT+1}')
    def yload():
        for ch in range(4):
            a(f'buffer_load_dwordx4 {V(YR+4*ch,4)}, v{vS}, {S(SCR_)}, 0 offen{off(soff[ch])} sc1')
    def ypoll():
        a(f'buffer_load_dwordx2 {V(vP,2)}, v{vF}, {S(WS_)}, s7 offen sc1')
    if cfg.xnfast:
        PR = 56
        a(f's_mov_b32 s{sFET}, 0')
        YF = 72
        def yflags():
            a(f'buffer_load_dwordx4 {V(YF,4)}, v{vU}, {S(WS_)}, s7 offen sc1')
            a(f'buffer_load_dwordx4 {V(YF+4,4)}, v{vU}, {S(WS_)}, s7 offen offset:16 sc1')
        if cfg.yprog:
            a(f'v_lshlrev_b32 v{vU}, 5, v{vT0}')
            yflags()
        else: ypoll()
        for r in range(8):
            a(f'v_lshlrev_b32 v{PR+2*r}, 16, v{XR+16+r}')
            a(f'v_and_b32 v{PR+2*r+1}, 0xffff0000, v{XR+16+r}')
        for r in range(8):
            a(f'v_rcp_f32 v{PR+2*r}, v{PR+2*r}')
        for i in range(16): unpack(Z + 2 * i, Z + 2 * i + 1, XR + i)
        for r in range(8):
            a(f'v_mul_f32 v{PR+2*r+1}, -v{PR+2*r+1}, v{PR+2*r}')
        for r in range(8):
            for h in (0, 2):
                a(f'v_pk_fma_f32 {V(XN+4*r+h,2)}, {V(Z+4*r+h,2)}, {V(PR+2*r,2)}, {V(PR+2*r,2)} op_sel:[0,0,1] op_sel_hi:[1,0,1]')
        for i in range(16):
            pk('v_pk_add_f32', Z + 2 * i, Z + 2 * i, XN + 2 * i)
    else:
        for r in range(8):
            a(f'v_and_b32 v{MM+r}, 0xffff0000, v{XR+16+r}')
            a(f'v_lshlrev_b32 v{INV+r}, 16, v{XR+16+r}')
            a(f'v_rcp_f32 v{INV+r}, v{INV+r}')
        for i in range(16): unpack(Z + 2 * i, Z + 2 * i + 1, XR + i)
        def yload():
            for ch in range(4):
                a(f'buffer_load_dwordx4 {V(YR+4*ch,4)}, v{vS}, {S(SCR_)}, 0 offen{off(soff[ch])} sc1')
        def ypoll():
            a(f'buffer_load_dwordx2 {V(vP,2)}, v{vF}, {S(WS_)}, s7 offen sc1')
        a(f's_mov_b32 s{sFET}, 0')
        for r in range(8):
            if r == 0: ypoll()
            if r in (3, 6):
                lbl = f'L_c_yp{r}'
                a(f's_cmp_eq_u32 s{sFET}, 1')
                a(f's_cbranch_scc1 {lbl}')
                a('s_waitcnt vmcnt(0)')
                a(f'v_cmp_eq_u64 vcc, {V(vP,2)}, {V(vN,2)}')
                a('s_cmp_eq_u64 vcc, exec')
                a(f's_cbranch_scc1 {lbl}_f')
                ypoll()
                a(f's_branch {lbl}')
                a.label(f'{lbl}_f')
                yload()
                a(f's_mov_b32 s{sFET}, 1')
                a.label(lbl)
            for i in range(4): a(f'v_sub_f32 v{XN+4*r+i}, v{Z+4*r+i}, v{MM+r}')
            round2(XN + 4 * r, FT + 4); round2(XN + 4 * r + 2, FT + 5)
            for i in range(4): a(f'v_mul_f32 v{XN+4*r+i}, v{XN+4*r+i}, v{INV+r}')
            round2(XN + 4 * r, FT + 4); round2(XN + 4 * r + 2, FT + 5)
            pk('v_pk_add_f32', Z + 4 * r, Z + 4 * r, XN + 4 * r)
            pk('v_pk_add_f32', Z + 4 * r + 2, Z + 4 * r + 2, XN + 4 * r + 2)
    ts(10)
    a(f's_mov_b32 s{sCNT}, 0')
    if cfg.yprog:
        a('s_mov_b64 s[80:81], -1')
        a.label('L_c_polly')
        a('s_waitcnt vmcnt(0)')
        a(f'v_cmp_eq_u64 s[82:83], {V(YF,2)}, {V(vN,2)}')
        for i in range(1, 4):
            a(f'v_cmp_eq_u64 vcc, {V(YF+2*i,2)}, {V(vN,2)}')
            a('s_and_b64 s[82:83], s[82:83], vcc')
        a('s_and_b64 exec, s[82:83], s[80:81]')
        a('s_cbranch_execz L_c_ynone')
        yload()
        a.label('L_c_ynone')
        a('s_andn2_b64 s[80:81], s[80:81], s[82:83]')
        a('s_mov_b64 exec, s[80:81]')
        a('s_cbranch_execz L_c_yall')
        if cfg.ysleep: a(f's_sleep {cfg.ysleep}')
        yflags()
        a('s_mov_b64 exec, -1')
        a(f's_add_u32 s{sCNT}, s{sCNT}, 1')
        a(f's_cmp_lt_u32 s{sCNT}, {BIG*4}')
        a('s_cbranch_scc1 L_c_polly')
        a.label('L_c_yall')
        a('s_mov_b64 exec, -1')
    else:
        a(f's_cmp_eq_u32 s{sFET}, 1')
        a('s_cbranch_scc1 L_c_yok2')
        a.label('L_c_polly')
        a('s_waitcnt vmcnt(0)')
        a(f'v_cmp_ne_u64 vcc, {V(vP,2)}, {V(vN,2)}')
        a('s_cbranch_vccz L_c_yok')
        if cfg.ysleep: a(f's_sleep {cfg.ysleep}')
        if cfg.ymask: a('s_mov_b64 exec, vcc')
        ypoll()
        if cfg.ymask: a('s_mov_b64 exec, -1')
        a(f's_add_u32 s{sCNT}, s{sCNT}, 1')
        a(f's_cmp_lt_u32 s{sCNT}, {BIG*4}')
        a('s_cbranch_scc1 L_c_polly')
        a.label('L_c_yok')
        yload()
    a.label('L_c_yok2')
    ts(11)
    if cfg.sfast:
        a('s_and_b32 s14, s14, 0x7ff')
        a('s_sub_u32 s14, 2047, s14')
        a('s_and_b32 s15, s15, 0x7ff')
        a('s_sub_u32 s15, 2047, s15')
        a('s_lshl_b32 s12, s5, 1')
        a(f's_add_u32 s12, s12, s{sHR}')
        a('s_lshr_b32 s8, s14, 5')
        a('s_lshr_b32 s9, s15, 5')
        a('s_cmp_eq_u32 s8, s12')
        a('s_cbranch_scc1 L_c_spec')
        a('s_cmp_eq_u32 s9, s12')
        a('s_cbranch_scc1 L_c_spec')
        OP = 16
        def fm(rp):
            Y0, Y1 = FT + 8 * (rp & 1), FT + 4 + 8 * (rp & 1)
            for ch in range(4): unpack(Y0 + ch, Y1 + ch, YR + 4 * ch + rp)
            un = [(2 * rp, 0, Y0), (2 * rp, 1, Y0 + 2), (2 * rp + 1, 0, Y1), (2 * rp + 1, 1, Y1 + 2)]
            for r, h, y in un:
                pk('v_pk_fma_f32', Z + 4 * r + 2 * h, y, XN + 4 * r + 2 * h, Z + 4 * r + 2 * h)
        def cv(r):
            for h in (0, 1):
                a(f'v_cvt_pk_bf16_f32 v{OP+2*r+h}, v{Z+4*r+2*h}, v{Z+4*r+2*h+1}')
        def st(r):
            so, io = rowoff[r]
            a(f'buffer_store_dwordx2 {V(OP+2*r,2)}, v{vC}, {S(OUT_)}, {so} offen{off(io)}{cfg.polout}')
        a('s_waitcnt vmcnt(0)')
        ts(12)
        for rp in range(4):
            fm(rp); cv(2 * rp); cv(2 * rp + 1); st(2 * rp); st(2 * rp + 1)
        ts(13)
        a('s_branch L_c_done')
        a.label('L_c_spec')
        a(f'v_lshlrev_b32 v{vT3}, 11, v{vT1}')
        a(f'v_lshl_add_u32 v{vT3}, v{vT0}, 4, v{vT3}')
        a(f'v_add_u32 v{vT3}, s10, v{vT3}')
        a('s_lshl_b32 s12, s12, 5')
        a(f'v_lshl_add_u32 v{vU}, v{vT1}, 3, s12')
        a(f'v_sub_u32 v{vAa}, s14, v{vU}')
        a(f'v_sub_u32 v{vBa}, s15, v{vU}')
        a('s_waitcnt vmcnt(0)')
        ts(12)
        for rp in range(4):
            fm(rp)
            for r in (2 * rp, 2 * rp + 1):
                a(f'ds_write_b128 v{vT3}, {V(Z+4*r,4)} offset:{256*r}')
        lds_inc(C_ST, vT2)
        for r in range(8): cv(r)
        for r in range(8):
            a(f'v_cmp_ne_u32 vcc, {r}, v{vAa}')
            a(f'v_cmp_ne_u32 s[8:9], {r}, v{vBa}')
            a('s_and_b64 exec, vcc, s[8:9]')
            st(r)
            a('s_mov_b64 exec, -1')
        ts(13)
        a('s_waitcnt lgkmcnt(0)')
    else:
        a('s_and_b32 s14, s14, 0x7ff')
        a('s_sub_u32 s14, 2047, s14')
        a('s_and_b32 s15, s15, 0x7ff')
        a('s_sub_u32 s15, 2047, s15')
        a('s_lshl_b32 s12, s5, 1')
        a(f's_add_u32 s12, s12, s{sHR}')
        a('s_lshr_b32 s14, s14, 5')
        a('s_lshr_b32 s15, s15, 5')
        a('s_waitcnt vmcnt(0)')
        ts(12)
        OP = 16
        for rp in range(4):
            Y0, Y1 = FT + 8 * (rp & 1), FT + 4 + 8 * (rp & 1)
            for ch in range(4): unpack(Y0 + ch, Y1 + ch, YR + 4 * ch + rp)
            un = [(2 * rp, 0, Y0), (2 * rp, 1, Y0 + 2), (2 * rp + 1, 0, Y1), (2 * rp + 1, 1, Y1 + 2)]
            for r, h, y in un:
                pk('v_pk_fma_f32', Z + 4 * r + 2 * h, y, XN + 4 * r + 2 * h, Z + 4 * r + 2 * h)
            for r, h, y in un:
                a(f'v_cvt_pk_bf16_f32 v{OP+2*r+h}, v{Z+4*r+2*h}, v{Z+4*r+2*h+1}')
            for r in (2 * rp, 2 * rp + 1):
                so, io = rowoff[r]
                a(f'buffer_store_dwordx2 {V(OP+2*r,2)}, v{vC}, {S(OUT_)}, {so} offen{off(io)}{cfg.polout}')
        ts(13)
        a('s_cmp_eq_u32 s14, s12')
        a('s_cbranch_scc1 L_c_spec')
        a('s_cmp_eq_u32 s15, s12')
        a('s_cbranch_scc0 L_c_done')
        a.label('L_c_spec')
        a(f'v_lshlrev_b32 v{vT3}, 11, v{vT1}')
        a(f'v_lshl_add_u32 v{vT3}, v{vT0}, 4, v{vT3}')
        a(f'v_add_u32 v{vT3}, s10, v{vT3}')
        for r in range(8):
            a(f'ds_write_b128 v{vT3}, {V(Z+4*r,4)} offset:{256*r}')
        a('s_waitcnt vmcnt(0)')
        lds_inc(C_ST, vT2)
        a('s_waitcnt lgkmcnt(0)')
    a.label('L_c_done')
    if cfg.wb:
        a('s_cmp_eq_u32 s3, 0')
        a('s_cbranch_scc0 L_c_nowb')
        if cfg.wb > 1:
            a(f's_and_b32 s7, s5, {cfg.wb-1}')
            a('s_cmp_eq_u32 s7, 0')
            a('s_cbranch_scc0 L_c_nowb')
        a('s_waitcnt vmcnt(0)')
        a('buffer_wbl2 sc1')
        a.label('L_c_nowb')
    ts(14)
    ts_store(WS_, 0)
    a('s_endpgm')
    a.lines = part1 + a.lines + partM + ['L_code_end:'] + slow_lines

    ref = open('cdna_kernels/%s.s.ref' % NAME).read()
    head = ref[:ref.index('; @launch')]
    out = head + f'; @launch grid=(256,1,1) block=(512,1,1) lds={LDS_BYTES}\n'
    out += '.amdgcn_target "amdgcn-amd-amdhsa--gfx950"\n' + DOC.lstrip('\n') + '.text\n'
    out += f'.globl {NAME}_kernel\n.p2align 8\n.type {NAME}_kernel,@function\n'
    out += a.text()
    out += f'''.section .rodata,"a"
.p2align 6
.amdhsa_kernel {NAME}_kernel
  .amdhsa_next_free_vgpr 256
  .amdhsa_next_free_sgpr 102
  .amdhsa_accum_offset 256
  .amdhsa_group_segment_fixed_size 0
  .amdhsa_kernarg_size 112
  .amdhsa_user_sgpr_count 2
  .amdhsa_user_sgpr_kernarg_segment_ptr 1
  .amdhsa_system_sgpr_workgroup_id_x 1
  .amdhsa_float_denorm_mode_32 3
.end_amdhsa_kernel
'''
    return out, a.count

if __name__ == '__main__':
    cfg = Cfg()
    outp = 'cdna_kernels/%s.s' % NAME
    for arg in sys.argv[1:]:
        k, v = arg.split('=', 1)
        if k == 'out': outp = v
        else:
            cur = getattr(cfg, k)
            if isinstance(cur, bool): v = v in ('1', 'True', 'true')
            elif isinstance(cur, int): v = int(v)
            elif isinstance(cur, str): v = (' ' + v.replace('+', ' ')) if v else ''
            setattr(cfg, k, v)
    text, n = gen(cfg)
    open(outp, 'w').write(text)
    print('wrote', outp, n, 'instructions', 'lds', LDS_BYTES)
```
